```python
import torch

def _softmax(x, axis=-1):
    return torch.softmax(x, dim=axis)
def _gelu(x):
    return torch.nn.functional.gelu(x, approximate="tanh")
def _silu(x):
    return torch.nn.functional.silu(x)
def _sigmoid(x):
    return torch.sigmoid(x)
def _layernorm(x, axis=-1, eps=1e-5):
    m = x.mean(dim=axis, keepdim=True)
    v = x.var(dim=axis, keepdim=True, unbiased=False)
    return (x - m) / torch.sqrt(v + eps)
def _scatter_add(tgt, idx, src, axis=0):
    return tgt.clone().index_add_(axis, idx, src)
def _segment_sum(src, seg, n):
    out = torch.zeros((n,) + src.shape[1:], dtype=src.dtype)
    return out.index_add_(0, seg, src)
def _pad(x, pw):
    flat = tuple(v for pair in reversed(pw) for v in pair)
    return torch.nn.functional.pad(x, flat)

kernel_name = 'parallel_sum__mha_block__dense_activation_relu__prompt'

def setup_inputs():

    _w = (lambda a: (lambda t: t.to(torch.bfloat16) if t.is_floating_point() else t)(torch.as_tensor(a)))
    def _A_setup():
        B, S, D, H = 1, 2048, 640, 32
        return {
            "x": _w((lambda *s: torch.randn(*s, dtype=torch.bfloat16) * 0.05)(B, S, D)),
            "wqkv": _w((lambda *s: torch.randn(*s, dtype=torch.bfloat16) * 0.2)(D, 3 * D)),
            "wo": _w((lambda *s: torch.randn(*s, dtype=torch.bfloat16) * 0.1)(D, D)),
        }
    _A_in = _A_setup()

    def _B_setup():
        B, S, D, Dff = 1, 2048, 640, 1728
        return {
            "x": _w((lambda *s: torch.randn(*s, dtype=torch.bfloat16) * 0.05)(B, S, D)),
            "w1": _w((lambda *s: torch.randn(*s, dtype=torch.bfloat16) * 0.2)(D, Dff)),
            "w2": _w((lambda *s: torch.randn(*s, dtype=torch.bfloat16) * 0.2)(Dff, D)),
        }
    _B_in = _B_setup()

    return {
        "A_x": _A_in["x"],
        "A_wqkv": _A_in["wqkv"],
        "A_wo": _A_in["wo"],
        "B_x": _B_in["x"],
        "B_w1": _B_in["w1"],
        "B_w2": _B_in["w2"],
    }

def reference(A_x, A_wqkv, A_wo, B_x, B_w1, B_w2):
    def _A_ref(x, wqkv, wo):
        B, S, D = x.shape
        H = 32
        Dh = D // H
        qkv = (lambda x, *d: x.permute(*d))((x @ wqkv).reshape(B, S, 3, H, Dh), 2, 0, 3, 1, 4)
        q, k, v = qkv[0], qkv[1], qkv[2]
        scores = torch.einsum("bhqd,bhkd->bhqk", q, k) * (Dh ** -0.5)
        p = _softmax(scores, axis=-1)
        o = torch.einsum("bhqk,bhkd->bhqd", p, v)
        return (lambda x, *d: x.permute(*d))(o, 0, 2, 1, 3).reshape(B, S, D) @ wo

    def _B_ref(x, w1, w2):
        h = torch.einsum("bsd,df->bsf", x, w1)
        zero = torch.zeros_like(h)
        h = torch.maximum(h, zero)
        return torch.einsum("bsf,fd->bsd", h, w2)

    x = A_x
    xn = _layernorm(x, axis=-1)
    return x + _A_ref(xn, A_wqkv, A_wo) + _B_ref(xn, B_w1, B_w2)
```

```python
class Asm:
    def __init__(self):
        self.lines = []
        self._lab = 0
    def __call__(self, s=''):
        for l in s.split('\n'):
            l = l.strip()
            if not l: continue
            if l.endswith(':') or l.startswith('.') or l.startswith(';'):
                self.lines.append(l)
            else:
                self.lines.append('    ' + l)
    def label(self, base):
        self._lab += 1
        return f'L_{base}_{self._lab}'
    def text(self):
        return '\n'.join(self.lines) + '\n'

def v(a, n=1):
    return f'v{a}' if n == 1 else f'v[{a}:{a+n-1}]'
def s(a, n=1):
    return f's{a}' if n == 1 else f's[{a}:{a+n-1}]'

def kernel_header(name):
    return f""".text
.globl {name}
.p2align 8
.type {name},@function
{name}:
"""
def kernel_desc(name, vgpr, sgpr=102, accum=None):
    accum = accum if accum is not None else (vgpr + 3)//4*4
    return f""".section .rodata,"a"
.p2align 6
.amdhsa_kernel {name}
  .amdhsa_next_free_vgpr {vgpr}
  .amdhsa_next_free_sgpr {sgpr}
  .amdhsa_accum_offset {accum}
  .amdhsa_group_segment_fixed_size 0
  .amdhsa_kernarg_size 72
  .amdhsa_user_sgpr_count 2
  .amdhsa_user_sgpr_kernarg_segment_ptr 1
  .amdhsa_system_sgpr_workgroup_id_x 1
  .amdhsa_float_denorm_mode_32 3
.end_amdhsa_kernel
"""
def interleave(main, fill, start=0, every=1):
    out = []; fi = 0
    for i, m in enumerate(main):
        out.append(m)
        if i >= start and (i - start) % every == 0 and fi < len(fill):
            out.append(fill[fi]); fi += 1
    out += fill[fi:]
    return out

S, D, H, DH, FF = 2048, 640, 32, 20, 1728
KVREC = 2816
WS_Q  = 0
WS_Q_SZ = H*64*1280
WS_KV = WS_Q + WS_Q_SZ
WS_KV_SZ = H*64*KVREC
WS_H  = WS_KV + WS_KV_SZ
WS_H_SZ = 64*432*256
WS_O  = WS_H + WS_H_SZ
WS_O_SZ = 64*H*1280
WS_Y  = WS_O + WS_O_SZ
WS_Y_SZ = S*D*2
WS_END = WS_Y + WS_Y_SZ

WS_STAMP = 24<<20
import os
STAMPS = os.environ.get('STAMPS') == '1'
def stamp(a, i, real=False):
    if not STAMPS: return
    a(f's_{"memrealtime" if real else "memtime"} s[{64+2*i}:{65+2*i}]')
def stamp_dump(a, wave_sgpr, n, ws_lo, kidx=0, vt=0):
    if not STAMPS: return
    a(f"""
    s_waitcnt lgkmcnt(0)
    s_add_u32 s96, s{ws_lo}, {WS_STAMP + kidx*(1<<20)}
    s_addc_u32 s97, s{ws_lo+1}, 0
    s_mov_b32 s98, 0x100000
    s_mov_b32 s99, 0x20000
    s_lshl_b32 s60, s2, 4
    s_add_u32 s60, s60, s{wave_sgpr}
    s_lshl_b32 s60, s60, 6
    s_mov_b64 exec, 1
    v_mov_b32 v{vt}, 0
    """)
    for i in range(n):
        a(f'v_mov_b32 v{vt+1}, s{64+2*i}\nbuffer_store_dword v{vt+1}, v{vt}, s[96:99], s60 offen offset:{4*i}')

def stamp_loop(a, base, cnt_sgpr, n):
    if not STAMPS: return
    a('s_waitcnt lgkmcnt(0)')
    for i in range(n-1):
        a(f's_mov_b32 s{64+2*(base+i)}, s{64+2*(base+i+1)}')
    a(f's_memtime s[{64+2*(base+n-1)}:{65+2*(base+n-1)}]')
```

```python
from asmlib import *
import math, struct

def f2u(x): return struct.unpack('<I', struct.pack('<f', x))[0]

XSZ = 192*128
WSZ = 64*320
SLOT = XSZ + WSZ
L_STI = 0
L_STA = L_STI + 1536
L_STB = L_STA + 768
L_CF  = L_STB + 768
L_CP  = L_CF + 640
RB = (L_CP + 16*640 + 256 + 1023)//1024*1024
K1_LDS = RB + 3*SLOT
QSCALE = math.log2(math.e)/math.sqrt(20.0)

import os
MIX = int(os.environ.get('K1_MIX','0')); ROT = int(os.environ.get('K1_ROT','0')); NOSTATS = int(os.environ.get('K1_NOSTATS','0')); NOMFMA = int(os.environ.get('K1_NOMFMA','0'))
def gen_k1(name='k1_kernel'):
    a = Asm()
    a(kernel_header(name))
    sX, sW, sO = 8, 12, 16
    sT, sMB, sCG, sWV = 20, 21, 22, 23
    sSTR = 24
    sHS, sREC = 25, 26
    sS = 27
    sSLOT = 28
    sXO, sWO = 29, 30
    sTMP, sTMP2 = 31, 32
    sONE = 33
    sQS = 34
    sBASE = 35
    sT0 = 36
    sNCT = 37
    sTY = 38
    sWSTEP = 39
    stamp(a, 0); stamp(a, 14, True)
    a(f'''
    s_cmp_ge_u32 s2, 256
    s_cbranch_scc1 L_k1_end
    s_load_dwordx4 s[4:7], s[0:1], 0        ; x, wqkv
    s_load_dwordx2 s[40:41], s[0:1], 32     ; w1
    s_load_dwordx2 s[42:43], s[0:1], 64     ; ws
    s_and_b32 s{sT}, s2, 7
    s_lshl_b32 s{sT}, s{sT}, 5
    s_lshr_b32 s{sTMP}, s2, 3
    s_add_u32 s{sT}, s{sT}, s{sTMP}
    s_cmp_ge_u32 s{sT}, 253
    s_cbranch_scc1 L_k1_end
    v_lshrrev_b32 v1, 6, v0
    v_and_b32 v0, 63, v0                    ; lane
    s_mul_i32 s{sCG}, s{sT}, 171
    s_lshr_b32 s{sCG}, s{sCG}, 10
    s_mul_i32 s{sTMP}, s{sCG}, 6
    s_sub_u32 s{sMB}, s{sT}, s{sTMP}
    v_readfirstlane_b32 s{sWV}, v1
    s_cmp_lt_u32 s{sT}, 138
    s_cbranch_scc1 L_k1_mapped
    s_sub_u32 s{sTMP2}, s{sT}, 138
    s_mul_i32 s{sCG}, s{sTMP2}, 205
    s_lshr_b32 s{sCG}, s{sCG}, 10
    s_mul_i32 s{sTMP}, s{sCG}, 5
    s_sub_u32 s{sMB}, s{sTMP2}, s{sTMP}
    s_add_u32 s{sMB}, s{sMB}, 6
    L_k1_mapped:
    s_lshr_b32 s{sTY}, s{sCG}, 2
    s_min_u32 s{sTY}, s{sTY}, 3
    s_waitcnt lgkmcnt(0)
    s_mov_b32 s{sX}, s4
    s_mov_b32 s{sX+1}, s5
    s_mov_b32 s{sX+2}, {S*D*2}
    s_mov_b32 s{sX+3}, 0x20000
    s_cmp_lt_u32 s{sCG}, 12
    s_cselect_b32 s{sW}, s6, s40
    s_cselect_b32 s{sW+1}, s7, s41
    s_mov_b32 s{sW+3}, 0x20000
    s_mov_b32 s{sSTR}, 3456
    s_cselect_b32 s{sSTR}, 3840, s{sSTR}
    s_mul_i32 s{sW+2}, s{sSTR}, 640
    s_cselect_b32 s{sTMP}, 0, 12
    s_sub_u32 s{sTMP}, s{sCG}, s{sTMP}
    s_mul_i32 s{sWO}, s{sTMP}, 320
    s_mov_b32 s{sONE}, 0x3f803f80
    s_cmp_ge_u32 s{sWV}, 4
    s_cbranch_scc1 L_k1_helper
    ''')
    ACC = 0; XF = 120; WF = 168
    vXA = [208, 209]; vWA = [210, 211]
    vXB = [212, 213]; vWB = [214, 215]
    a(f'''
    s_setprio 1
    v_mov_b32 v224, v0
    s_and_b32 s{sTMP}, s{sWV}, 1            ; th
    s_lshr_b32 s{sTMP2}, s{sWV}, 1          ; ch
    v_and_b32 v2, 15, v0                    ; tau / (4r+c)
    v_lshrrev_b32 v3, 4, v0                 ; g
    s_mul_i32 s44, s{sTMP}, {96*128}
    v_lshrrev_b32 v4, 1, v2
    v_xor_b32 v4, v4, v3                    ; g ^ (tau>>1)
    v_lshlrev_b32 v5, 7, v2
    v_add_u32 v5, s44, v5
    v_lshl_add_u32 v{vXB[0]}, v4, 4, v5
    v_xor_b32 v4, 4, v4
    v_lshl_add_u32 v{vXB[1]}, v4, 4, v5
    v_lshrrev_b32 v4, 2, v2                 ; r
    v_lshl_add_u32 v4, v3, 3, v4            ; 8g + r
    v_mul_u32_u24 v4, 320, v4
    v_and_b32 v5, 3, v2                     ; c
    v_lshl_add_u32 v4, v5, 3, v4            ; + 8c
    s_mul_i32 s44, s{sTMP2}, 160
    v_add_u32 v4, s44, v4
    v_and_b32 v5, 1, v3
    v_lshlrev_b32 v5, 5, v5                 ; 32*(g&1)
    v_add_u32 v6, v4, v5
    v_sub_u32 v7, v4, v5
    s_cmp_eq_u32 s{sTMP2}, 0
    s_cselect_b64 vcc, -1, 0
    v_cndmask_b32 v{vWB[0]}, v7, v6, vcc
    v_cndmask_b32 v{vWB[1]}, v6, v7, vcc
    ''')
    a(f'''
    s_mul_i32 s{sT0}, s{sMB}, 6
    s_mul_i32 s44, s{sTMP}, 3
    s_add_u32 s{sT0}, s{sT0}, s44
    s_and_b32 s44, s{sCG}, 3
    s_sub_u32 s45, s{sCG}, 12
    s_cmp_eq_u32 s{sTY}, 3
    s_cselect_b32 s44, s45, s44
    s_lshl_b32 s44, s44, 3
    s_lshl_b32 s45, s{sTMP2}, 2
    s_add_u32 s44, s44, s45
    s_mov_b32 s{sNCT}, 5
    s_cmp_eq_u32 s44, 84
    s_cselect_b32 s45, 3, 5
    s_cmp_eq_u32 s{sTY}, 3
    s_cselect_b32 s{sNCT}, s45, 5
    s_mov_b32 s{sHS}, {64*KVREC}
    s_mov_b32 s{sREC}, {KVREC}
    s_mov_b32 s46, {WS_KV}
    s_mov_b32 s47, {WS_KV_SZ}
    s_cselect_b32 s{sHS}, 1280, s{sHS}
    s_cselect_b32 s{sREC}, {432*256}, s{sREC}
    s_cselect_b32 s46, {WS_H}, s46
    s_cselect_b32 s47, {WS_H_SZ}, s47
    s_cmp_eq_u32 s{sTY}, 0
    s_cselect_b32 s{sHS}, {64*1280}, s{sHS}
    s_cselect_b32 s{sREC}, 1280, s{sREC}
    s_cselect_b32 s46, {WS_Q}, s46
    s_cselect_b32 s47, {WS_Q_SZ}, s47
    s_mul_i32 s{sBASE}, s44, s{sHS}
    s_add_u32 s{sO}, s42, s46
    s_addc_u32 s{sO+1}, s43, 0
    s_mov_b32 s{sO+2}, s47
    s_mov_b32 s{sO+3}, 0x20000
    ''')
    for i in range(120):
        a(f'v_mov_b32 v{ACC+i}, 0')
    a(f'''
    s_mov_b32 s{sSLOT}, {RB}
    v_add_u32 v{vXA[0]}, {RB}, v{vXB[0]}
    v_add_u32 v{vXA[1]}, {RB}, v{vXB[1]}
    v_add_u32 v{vWA[0]}, {RB}, v{vWB[0]}
    v_add_u32 v{vWA[1]}, {RB}, v{vWB[1]}
    s_mov_b32 s{sS}, 0
    ''')
    def reads(ss, buf):
        r = []
        xs = [f'ds_read_b128 {v(XF+24*buf+4*tt,4)}, v{vXA[ss]} offset:{tt*2048}' for tt in range(6)]
        ws = []
        for ct in range(5):
            for e in range(2):
                ws.append(f'ds_read_b64_tr_b16 {v(WF+20*buf+4*ct+2*e,2)}, v{vWA[ct&1]} offset:{XSZ+(32*ss+4*e)*320+32*ct}')
        return ws[0:2] + xs + ws[2:]
    def mfmas(buf, vori):
        m = []
        for ct in range(5):
            for tt in range(6):
                d = v(ACC+4*(tt*5+ct),4); w = v(WF+20*buf+4*ct,4); x = v(XF+24*buf+4*tt,4)
                m.append(f'v_mfma_f32_16x16x32_bf16 {d}, {x}, {w}, {d}' if vori else f'v_mfma_f32_16x16x32_bf16 {d}, {w}, {x}, {d}')
        return m if not NOMFMA else ['v_mfma_f32_4x4x4_16b_bf16 v[116:119], v[120:121], v[122:123], v[116:119]']*30
    stamp(a, 1)
    a('s_barrier')
    stamp(a, 2)
    for r in reads(0,0): a(r)
    a(f'''
    s_cmp_eq_u32 s{sTY}, 2
    s_waitcnt lgkmcnt(0)
    s_cbranch_scc1 L_k1_loopV
    ''')
    for vori in (False, True):
        L = 'L_k1_loopV' if vori else 'L_k1_loopN'
        a('.p2align 5')
        a(f'{L}:')
        seq = interleave(mfmas(0,vori), reads(1,1), 0, 1)
        cnt = 0
        for ins in seq:
            a(ins)
            if ins.startswith('v_mfma'):
                cnt += 1
                if cnt == 20:
                    a(f'''
                    s_add_u32 s{sSLOT}, s{sSLOT}, {SLOT}
                    s_cmp_eq_u32 s{sSLOT}, {RB+3*SLOT}
                    s_cselect_b32 s{sSLOT}, {RB}, s{sSLOT}
                    ''')
                if cnt == 24:
                    a('s_waitcnt lgkmcnt(0)\ns_barrier')
                if 25 <= cnt <= 28:
                    k = cnt-25
                    dst = [vXA[0], vXA[1], vWA[0], vWA[1]][k]; src = [vXB[0], vXB[1], vWB[0], vWB[1]][k]
                    a(f'v_add_u32 v{dst}, s{sSLOT}, v{src}')
        seq = interleave(mfmas(1,vori), reads(0,0), 0, 1)
        cnt = 0
        for ins in seq:
            a(ins)
            if ins.startswith('v_mfma'):
                cnt += 1
                if cnt == 26: a(f's_add_u32 s{sS}, s{sS}, 1\ns_cmp_lt_u32 s{sS}, 10')
                if cnt == 28: a('s_waitcnt lgkmcnt(0)')
        a(f's_cbranch_scc1 {L}')
        a(f's_branch {"L_k1_epiV" if vori else "L_k1_epiN"}')
    ST = 120; CC = 132; OUT = 152; VO = 168
    a('L_k1_epiN:')
    stamp(a, 3)
    a(f'''
    v_and_b32 v{216}, 15, v224
    v_lshrrev_b32 v{217}, 4, v224
    s_and_b32 s{sTMP}, s{sWV}, 1
    s_lshr_b32 s{sTMP2}, s{sWV}, 1
    s_mul_i32 s44, s{sTMP}, {96*8}
    s_mul_i32 s45, s{sTMP2}, 320
    v_lshl_add_u32 v218, v216, 3, s44
    v_lshl_add_u32 v219, v217, 4, s45       ; c addr
    ''')
    for ct in range(5):
        a(f'''
        v_add_u32 v220, {4*ct}, v217
        v_mul_u32_u24 v221, 52, v220
        v_lshrrev_b32 v221, 8, v221             ; hh
        v_mul_u32_u24 v222, 5, v221
        v_sub_u32 v220, v220, v222              ; p
        v_mul_lo_u32 v221, v221, s{sHS}
        v_lshl_add_u32 v221, v220, 8, v221
        v_lshl_add_u32 v{VO+ct}, v216, 4, v221
        ''')
    a('s_barrier')
    stamp(a, 4)
    for tt in range(6): a(f'ds_read_b64 {v(ST+2*tt,2)}, v218 offset:{L_STI+tt*128}')
    for ct in range(5): a(f'ds_read_b128 {v(CC+4*ct,4)}, v219 offset:{L_CF+ct*64}')
    a(f's_cmp_eq_u32 s{sTY}, 3\ns_cselect_b32 s48, 0, 0x80008000')
    a('s_waitcnt lgkmcnt(0)')
    for tp in range(3):
        Lskip = a.label('k1n_tp')
        a(f'''
        s_add_u32 s44, s{sT0}, {tp}
        s_cmp_ge_u32 s44, 64
        s_cbranch_scc1 L_k1_fin
        s_mul_i32 s44, s44, s{sREC}
        s_add_u32 s44, s44, s{sBASE}
        ''')
        for ct in range(5):
            o = OUT + 4*(ct & 1) + 8*0
            o = OUT + 4*((tp*5+ct) % 4)
            ops1, ops2, ops3, ops4 = [], [], [], []
            for b in range(2):
                tt = 2*tp+b; ac = ACC+4*(tt*5+ct)
                for h in range(2):
                    ops1.append(f'v_pk_fma_f32 {v(ac+2*h,2)}, {v(CC+4*ct+2*h,2)}, {v(ST+2*tt,2)}, {v(ac+2*h,2)} op_sel:[0,1,0] op_sel_hi:[1,1,1]')
                    ops2.append(f'v_pk_mul_f32 {v(ac+2*h,2)}, {v(ac+2*h,2)}, {v(ST+2*tt,2)} op_sel:[0,0] op_sel_hi:[1,0]')
                    ops3.append(f'v_cvt_pk_bf16_f32 v{o+2*b+h}, v{ac+2*h}, v{ac+2*h+1}')
                    ops4.append(f'v_pk_max_i16 v{o+2*b+h}, v{o+2*b+h}, s48')
            for x in ops1+ops2+ops3+ops4: a(x)
            if ct >= 3:
                a(f's_cmp_le_u32 s{sNCT}, {ct}\ns_cbranch_scc1 {Lskip}')
            a(f'buffer_store_dwordx4 {v(o,4)}, v{VO+ct}, {s(sO,4)}, s44 offen')
        a(f'{Lskip}:')
    a('s_branch L_k1_fin')
    SA = 120; SB = 128; CV = 136
    a('L_k1_epiV:')
    stamp(a, 3)
    a(f'''
    v_and_b32 v216, 15, v224
    v_lshrrev_b32 v217, 4, v224
    s_and_b32 s{sTMP}, s{sWV}, 1
    s_lshr_b32 s{sTMP2}, s{sWV}, 1
    s_mul_i32 s44, s{sTMP}, {96*4}
    s_mul_i32 s45, s{sTMP2}, 320
    v_lshl_add_u32 v218, v217, 4, s44
    v_lshl_add_u32 v219, v216, 2, s45       ; c addr
    v_mul_u32_u24 v223, 384, v217
    v_add_u32 v223, 1280, v223
    ''')
    for ct in range(5):
        a(f'''
        v_add_u32 v220, {16*ct}, v216
        v_mul_u32_u24 v221, 205, v220
        v_lshrrev_b32 v221, 12, v221
        v_mul_u32_u24 v222, 20, v221
        v_sub_u32 v220, v220, v222              ; dh
        v_mul_lo_u32 v221, v221, s{sHS}
        v_add_u32 v221, v221, v223
        v_lshl_add_u32 v{VO+ct}, v220, 4, v221
        ''')
    CD = 176
    a(f'''
    v_mul_lo_u32 v221, v217, s{sHS}
    v_lshrrev_b32 v220, 2, v216
    v_mul_u32_u24 v220, 384, v220
    v_and_b32 v222, 3, v224
    v_lshl_add_u32 v220, v222, 4, v220
    v_add_u32 v220, {1280+320}, v220
    v_add_u32 v{VO+5}, v220, v221
    v_cmp_eq_u32 vcc, 0, v222
    v_mov_b32 v{CD}, 0
    v_mov_b32 v221, s{sONE}
    v_cndmask_b32 v{CD+2}, v{CD}, v221, vcc
    v_cndmask_b32 v{CD+3}, v{CD}, v221, vcc
    v_mov_b32 v220, 0x3f80
    v_cmp_eq_u32 vcc, 1, v222
    s_nop 1
    v_cndmask_b32 v{CD+1}, v{CD+2}, v220, vcc
    v_cndmask_b32 v{CD}, v{CD+2}, v221, vcc
    s_barrier
    ''')
    stamp(a, 4)
    for ct in range(5): a(f'ds_read_b32 v{CV+ct}, v219 offset:{L_CF+ct*64}')
    for tp in range(3):
        a(f'''
        s_add_u32 s44, s{sT0}, {tp}
        s_cmp_ge_u32 s44, 64
        s_cbranch_scc1 L_k1_fin
        s_mul_i32 s44, s44, s{sREC}
        s_add_u32 s44, s44, s{sBASE}
        ''')
        for b in range(2):
            a(f'ds_read_b128 {v(SA+4*b,4)}, v218 offset:{L_STA+(2*tp+b)*64}')
            a(f'ds_read_b128 {v(SB+4*b,4)}, v218 offset:{L_STB+(2*tp+b)*64}')
        a(f'buffer_store_dwordx4 {v(CD,4)}, v{VO+5}, {s(sO,4)}, s44 offen')
        a('s_waitcnt lgkmcnt(0)')
        for ct in range(5):
            o = OUT + 4*((tp*5+ct) % 4)
            cp = CV + (ct & ~1); hi = ct & 1
            ops1, ops2, ops3 = [], [], []
            for b in range(2):
                tt = 2*tp+b; ac = ACC+4*(tt*5+ct)
                for h in range(2):
                    ops1.append(f'v_pk_fma_f32 {v(ac+2*h,2)}, {v(SB+4*b+2*h,2)}, {v(cp,2)}, {v(ac+2*h,2)} op_sel:[0,{hi},0] op_sel_hi:[1,{hi},1]')
                    ops2.append(f'v_pk_mul_f32 {v(ac+2*h,2)}, {v(ac+2*h,2)}, {v(SA+4*b+2*h,2)}')
                    ops3.append(f'v_cvt_pk_bf16_f32 v{o+2*b+h}, v{ac+2*h}, v{ac+2*h+1}')
            for x in ops1+ops2+ops3: a(x)
            a(f'buffer_store_dwordx4 {v(o,4)}, v{VO+ct}, {s(sO,4)}, s44 offen')
    a('s_branch L_k1_fin')
    vXo = 8; vWo = 14
    vRX, vRWe, vRWo = 20, 21, 22
    vWX, vWWe, vWWo = 23, 24, 25
    SX, SQ, CA = 26, 32, 38
    DX, DW = 48, 72
    sHW = 44
    a('L_k1_helper:')
    a(f'''
    s_sub_u32 s{sHW}, s{sWV}, 4
    v_lshrrev_b32 v2, 3, v0                 ; r
    v_and_b32 v3, 7, v0                     ; p
    v_lshrrev_b32 v4, 1, v2
    v_xor_b32 v4, v4, v3                    ; p ^ (r>>1)
    s_mul_i32 s45, s{sMB}, 192
    s_mul_i32 s46, s{sHW}, 48
    s_add_u32 s45, s45, s46
    v_add_u32 v5, s45, v2
    v_mul_u32_u24 v5, 1280, v5
    v_lshl_add_u32 v6, v4, 4, v5
    v_xor_b32 v4, 4, v4
    v_lshl_add_u32 v7, v4, 4, v5
    ''')
    for i in range(6):
        a(f'v_add_u32 v{vXo+i}, {10240*i}, v{6+(i&1)}')
    for m in range(5):
        a(f'''
        v_add_u32 v2, {64*m}, v0
        v_mul_u32_u24 v3, 3277, v2
        v_lshrrev_b32 v3, 16, v3                ; row
        v_mul_u32_u24 v4, 20, v3
        v_sub_u32 v2, v2, v4                    ; p
        v_lshrrev_b32 v4, 2, v3
        v_and_b32 v4, 2, v4
        v_xor_b32 v2, v2, v4                    ; u
        v_lshl_add_u32 v3, s{sHW}, 4, v3
        v_mul_lo_u32 v3, v3, s{sSTR}
        v_lshl_add_u32 v{vWo+m}, v2, 4, v3
        ''')
    a(f'''
    s_lshl_b32 s{sWSTEP}, s{sSTR}, 6
    s_mov_b32 s{sXO}, 0
    s_mul_i32 s45, s{sHW}, 6144
    s_mul_i32 s46, s{sHW}, 5120
    s_add_u32 s46, s46, {XSZ}
    ''')
    def dma(slot_sgpr):
        L = []
        order = [('x',0),('w',0),('x',1),('w',1),('x',2),('w',2),('x',3),('w',3),('x',4),('w',4),('x',5)] if MIX else [('x',i) for i in range(6)]+[('w',i) for i in range(5)]
        for j,(k,i) in enumerate(order):
            pre = f's_add_u32 s47, s45, s{slot_sgpr}\ns_add_u32 s51, s46, s{slot_sgpr}\n' if j == 0 else ''
            if k == 'x': L.append(pre + f's_add_u32 m0, s47, {1024*i}\ns_nop 0\nbuffer_load_dwordx4 v{vXo+i}, {s(sX,4)}, s{sXO} offen lds')
            else: L.append(pre + f's_add_u32 m0, s51, {1024*i}\ns_nop 0\nbuffer_load_dwordx4 v{vWo+i}, {s(sW,4)}, s{sWO} offen lds')
        L[-1] += f"""
        s_add_u32 s{sXO}, s{sXO}, 128
        s_add_u32 s{sWO}, s{sWO}, s{sWSTEP}
        s_cmp_eq_u32 s{sXO}, 1280
        s_cselect_b32 s{sXO}, 0, s{sXO}
        s_cselect_b32 s{sWO}, s52, s{sWO}"""
        return L
    a(f's_mov_b32 s52, s{sWO}')
    if ROT:
        a(f"""
        s_lshr_b32 s49, s2, 3
        s_mul_i32 s49, s49, {ROT}
        s_mul_i32 s50, s49, 205
        s_lshr_b32 s50, s50, 11
        s_mul_i32 s50, s50, 10
        s_sub_u32 s49, s49, s50
        s_lshl_b32 s{sXO}, s49, 7
        s_mul_i32 s49, s49, s{sWSTEP}
        s_add_u32 s{sWO}, s{sWO}, s49
        """)
    Lp = a.label('k1h_pro')
    a(f's_mov_b32 s{sSLOT}, {RB}\n{Lp}:')
    for x in dma(sSLOT): a(x)
    a(f"""
    s_add_u32 s{sSLOT}, s{sSLOT}, {SLOT}
    s_cmp_lt_u32 s{sSLOT}, {RB+2*SLOT}
    s_cbranch_scc1 {Lp}
    """)
    a(f"""
    v_lshl_add_u32 v{vRX}, v0, 4, s45
    v_lshrrev_b32 v3, 4, v0                 ; g
    v_and_b32 v2, 15, v0
    v_lshrrev_b32 v4, 2, v2                 ; r
    v_and_b32 v5, 1, v3
    v_lshl_add_u32 v4, v5, 3, v4            ; 8(g&1)+r
    v_lshrrev_b32 v6, 1, v3
    v_lshl_add_u32 v4, v6, 2, v4            ; + 4(g>>1)
    v_mul_u32_u24 v4, 320, v4
    v_and_b32 v6, 3, v2
    v_lshl_add_u32 v4, v6, 3, v4
    v_add_u32 v4, s46, v4
    v_lshlrev_b32 v5, 5, v5
    v_add_u32 v{vRWe}, v4, v5
    v_sub_u32 v{vRWo}, v4, v5
    """)
    for i in range(22): a(f'v_mov_b32 v{SX+i}, 0')
    a(f"""
    s_mov_b32 s{sS}, 0
    s_mov_b32 s{sSLOT}, {RB}
    s_mov_b32 s48, {RB+2*SLOT}
    """)
    stamp(a, 1)
    dots = []
    for j in range(4):
        for i in range(6):
            dots.append(f'v_dot2_f32_bf16 v{SX+i}, v{DX+4*i+j}, s{sONE}, v{SX+i}')
            dots.append(f'v_dot2_f32_bf16 v{SQ+i}, v{DX+4*i+j}, v{DX+4*i+j}, v{SQ+i}')
    for j in range(2):
        for ct in range(10):
            dots.append(f'v_dot2_f32_bf16 v{CA+ct}, v{DW+2*ct+j}, s{sONE}, v{CA+ct}')
    if NOSTATS: dots = []
    def head(wait):
        a(f"""
        v_add_u32 v{vWX}, s{sSLOT}, v{vRX}
        v_add_u32 v{vWWe}, s{sSLOT}, v{vRWe}
        v_add_u32 v{vWWo}, s{sSLOT}, v{vRWo}
        s_waitcnt vmcnt({wait})
        s_barrier
        """)
        stamp_loop(a, 2, sS, 10)
        if not NOSTATS:
            for i in range(6): a(f'ds_read_b128 {v(DX+4*i,4)}, v{vWX} offset:{1024*i}')
            for ct in range(10): a(f'ds_read_b64_tr_b16 {v(DW+2*ct,2)}, v{vWWe if ct%2==0 else vWWo} offset:{32*ct}')
    def tail(L, n):
        a(f"""
        s_mov_b32 s48, s{sSLOT}
        s_add_u32 s{sSLOT}, s{sSLOT}, {SLOT}
        s_cmp_eq_u32 s{sSLOT}, {RB+3*SLOT}
        s_cselect_b32 s{sSLOT}, {RB}, s{sSLOT}
        s_add_u32 s{sS}, s{sS}, 1
        s_cmp_lt_u32 s{sS}, {n}
        s_cbranch_scc1 {L}
        """)
    a('L_k1h_loop:')
    head(11)
    D_ = dma(48)
    a(D_[0]); a(D_[1]); a('s_waitcnt lgkmcnt(0)')
    per = (len(dots)+8)//9
    for j in range(2, 11):
        for x in dots[(j-2)*per:(j-1)*per]: a(x)
        a(D_[j])
    tail('L_k1h_loop', 8)
    a('s_waitcnt vmcnt(11)\ns_branch L_k1h_loop2b\nL_k1h_loop2:\ns_waitcnt vmcnt(0)\nL_k1h_loop2b:')
    head(63)
    a('s_waitcnt lgkmcnt(0)')
    for x in dots: a(x)
    tail('L_k1h_loop2', 10)
    a(f'''
    v_lshrrev_b32 v3, 4, v0
    v_lshl_add_u32 v3, s{sHW}, 2, v3        ; 4w+g
    v_mul_u32_u24 v3, 640, v3
    v_and_b32 v2, 15, v0
    v_lshl_add_u32 v3, v2, 2, v3
    ''')
    for ct in range(10): a(f'ds_write_b32 v3, v{CA+ct} offset:{L_CP+64*ct}')
    for pat in ('quad_perm:[1,0,3,2]', 'quad_perm:[2,3,0,1]', 'row_half_mirror'):
        for i in range(12):
            a(f'v_add_f32_dpp v{SX+i}, v{SX+i}, v{SX+i} {pat} row_mask:0xf bank_mask:0xf')
    a(f'''
    s_cmp_eq_u32 s{sTY}, 0
    s_cselect_b32 s{sQS}, {f2u(QSCALE)}, 1.0
    s_mov_b32 s49, {f2u(1.0/640)}
    s_mov_b32 s50, {f2u(1e-5)}
    v_lshrrev_b32 v2, 3, v0
    s_mul_i32 s47, s{sHW}, 48
    v_add_u32 v2, s47, v2                   ; row
    v_lshlrev_b32 v4, 3, v2
    v_lshlrev_b32 v5, 2, v2
    ''')
    for i in range(6): a(f'v_mul_f32 v{DX+2*i+1}, s49, v{SX+i}')
    for i in range(6): a(f'v_mul_f32 v{SQ+i}, s49, v{SQ+i}')
    for i in range(6): a(f'v_fma_f32 v{SQ+i}, -v{DX+2*i+1}, v{DX+2*i+1}, v{SQ+i}')
    for i in range(6): a(f'v_max_f32 v{SQ+i}, 0, v{SQ+i}')
    for i in range(6): a(f'v_add_f32 v{SQ+i}, s50, v{SQ+i}')
    for i in range(6): a(f'v_rsq_f32 v{SQ+i}, v{SQ+i}')
    for i in range(6): a(f'v_sub_f32 v{DX+2*i+1}, 0, v{DX+2*i+1}')
    for i in range(6): a(f'v_mul_f32 v{DX+2*i}, s{sQS}, v{SQ+i}')
    for i in range(6):
        a(f'ds_write_b64 v4, {v(DX+2*i,2)} offset:{L_STI+64*i}')
        a(f'ds_write_b32 v5, v{DX+2*i} offset:{L_STA+32*i}')
        a(f'ds_write_b32 v5, v{DX+2*i+1} offset:{L_STB+32*i}')
    a(f'''
    s_mul_i32 s47, s{sHW}, 160
    v_lshl_add_u32 v3, v0, 2, s47
    s_waitcnt lgkmcnt(0)
    s_barrier
    ''')
    for j in range(16): a(f'ds_read_b32 v{DX+j}, v3 offset:{L_CP+640*j}')
    a('s_waitcnt lgkmcnt(0)')
    for st in (8,4,2,1):
        for j in range(st): a(f'v_add_f32 v{DX+j}, v{DX+j}, v{DX+j+st}')
    a(f'''
    s_mov_b32 exec_lo, -1
    s_mov_b32 exec_hi, 0xff
    ds_write_b32 v3, v{DX} offset:{L_CF}
    s_waitcnt lgkmcnt(0)
    s_barrier
    L_k1_fin:
    ''')
    stamp(a, 12)
    if STAMPS: a('s_waitcnt vmcnt(0)')
    stamp(a, 13); stamp(a, 15, True)
    stamp_dump(a, sWV, 16, 42, 0, 226)
    a('''
    L_k1_end:
    s_endpgm
    ''')
    return a.text(), kernel_desc(name, 232)

if __name__ == '__main__':
    t, d = gen_k1()
    print(len(t.splitlines()), K1_LDS)
```

```python
from asmlib import *
import struct, os
def f2u(x): return struct.unpack('<I', struct.pack('<f', x))[0]

K2_THREADS = 768
CH = 4*KVREC
L_KV = 0
L_B = 4*CH
BSL = 6144; BW = 4*BSL
L_MX = L_B + 4*BW
L_FLAG = L_MX + 2048
K2_LDS = L_FLAG + 64
DOFF = 80.0
NOB = int(os.environ.get('K2_NOB','0'))

def gen_k2(name='k2_kernel'):
    a = Asm()
    a(kernel_header(name))
    sKV, sQ, sOo, sW2, sHh, sY = 8, 12, 16, 20, 24, 28
    sWV, sHEAD, sQB, sJ, sXCD = 32, 33, 34, 35, 36
    sT, sT2, sC, sKVO, sKVS, sHB = 37, 38, 39, 44, 45, 46
    LANE = 161
    stamp(a, 0); stamp(a, 14, True)
    a(f'''
    s_cmp_ge_u32 s2, 256
    s_cbranch_scc1 L_k2_end
    s_load_dwordx2 s[42:43], s[0:1], 64     ; ws
    s_load_dwordx2 s[40:41], s[0:1], 40     ; w2
    v_lshrrev_b32 v1, 6, v0
    v_and_b32 v{LANE}, 63, v0
    s_and_b32 s{sXCD}, s2, 7
    s_lshr_b32 s{sJ}, s2, 3
    v_readfirstlane_b32 s{sWV}, v1
    s_lshr_b32 s{sT}, s{sJ}, 3
    s_lshl_b32 s{sHEAD}, s{sXCD}, 2
    s_add_u32 s{sHEAD}, s{sHEAD}, s{sT}
    s_and_b32 s{sQB}, s{sJ}, 7
    s_mul_i32 s{sHB}, s{sHEAD}, {64*KVREC}
    s_waitcnt lgkmcnt(0)
    s_add_u32 s{sKV}, s42, {WS_KV}
    s_addc_u32 s{sKV+1}, s43, 0
    s_mov_b32 s{sKV+2}, {WS_KV_SZ}
    s_mov_b32 s{sKV+3}, 0x20000
    s_cmp_ge_u32 s{sWV}, 8
    s_cbranch_scc1 L_k2_B
    ''')
    Sr = lambda q, par: 32*q + 16*par
    Or = lambda q: 64 + 16*q
    Pr = lambda q: 96 + 8*q
    Q1 = lambda q: 112 + 6*q
    Q2 = lambda q: 116 + 6*q
    KM, KP, V0, V1 = 124, 128, 130, 134
    vKe, vKo, vKp, vV = 138, 139, 140, 141
    T0 = 142
    sKH, sTQ, sSEC = 47, 48, 49
    a(f'''
    s_add_u32 s{sQ}, s42, {WS_Q}
    s_addc_u32 s{sQ+1}, s43, 0
    s_mov_b32 s{sQ+2}, {WS_Q_SZ}
    s_mov_b32 s{sQ+3}, 0x20000
    s_lshr_b32 s{sKH}, s{sWV}, 2
    s_and_b32 s{sT}, s{sWV}, 3
    s_lshl_b32 s{sTQ}, s{sQB}, 3
    s_lshl_b32 s{sT}, s{sT}, 1
    s_add_u32 s{sTQ}, s{sTQ}, s{sT}
    s_lshl_b32 s{sT}, s{sHEAD}, 6
    s_add_u32 s{sT}, s{sT}, s{sTQ}
    s_mul_i32 s{sT}, s{sT}, 1280
    v_and_b32 v{T0}, 31, v{LANE}            ; rho / n
    v_lshrrev_b32 v{T0+1}, 5, v{LANE}       ; h
    v_lshlrev_b32 v{T0+2}, 3, v{T0}
    v_lshl_add_u32 v{T0+3}, v{T0+1}, 8, v{T0+2}      ; h*256 + n*8
    v_lshl_add_u32 v{T0+4}, v{T0+1}, 30, v{T0+2}
    ''')
    for q in range(2):
        a(f'''
        buffer_load_dwordx2 {v(Q1(q),2)}, v{T0+3}, {s(sQ,4)}, s{sT} offen offset:{1280*q}
        buffer_load_dwordx2 {v(Q1(q)+2,2)}, v{T0+3}, {s(sQ,4)}, s{sT} offen offset:{1280*q+512}
        buffer_load_dwordx2 {v(Q2(q),2)}, v{T0+4}, {s(sQ,4)}, s{sT} offen offset:{1280*q+1024}
        ''')
    a(f'''
    s_setprio 1
    s_add_u32 s{sOo}, s42, {WS_O}
    s_addc_u32 s{sOo+1}, s43, 0
    s_mov_b32 s{sOo+2}, {WS_O_SZ}
    s_mov_b32 s{sOo+3}, 0x20000
    s_mov_b32 s{sSEC}, 0
    s_mul_i32 s{sT}, s{sKH}, {2*KVREC}
    v_and_b32 v{T0+2}, 7, v{T0}
    v_lshlrev_b32 v{T0+2}, 1, v{T0+2}
    v_and_b32 v{T0+3}, 16, v{T0}
    v_bfe_u32 v{T0+4}, v{T0}, 3, 1
    v_add3_u32 v{T0+2}, v{T0+2}, v{T0+3}, v{T0+4}
    v_lshlrev_b32 v{T0+2}, 3, v{T0+2}
    v_lshl_add_u32 v{vKe}, v{T0+1}, 8, v{T0+2}
    v_add_u32 v{vKe}, s{sT}, v{vKe}
    v_add_u32 v{vKo}, 256, v{vKe}
    v_add_u32 v{T0+2}, 1024, v{T0+2}
    v_mov_b32 v{T0+3}, {1280+21*16}
    v_cmp_gt_u32 vcc, 32, v{LANE}
    v_cmp_lt_u32 s[50:51], 20, v{T0}
    v_mov_b32 v{T0+4}, 22
    v_cndmask_b32 v{vKp}, v{T0+3}, v{T0+2}, vcc
    v_add_u32 v{vKp}, s{sT}, v{vKp}
    v_cndmask_b32 v{T0+4}, v{T0}, v{T0+4}, s[50:51]
    v_mul_u32_u24 v{T0+3}, 384, v{T0+1}
    v_lshl_add_u32 v{T0+3}, v{T0+4}, 4, v{T0+3}
    v_add_u32 v{T0+3}, 1280, v{T0+3}
    v_add_u32 v{vV}, s{sT}, v{T0+3}
    ''')
    def rdK(slot, t):  return f'ds_read2st64_b64 {v(KM,4)}, v{vKo if t else vKe} offset0:{22*slot+5*t} offset1:{22*slot+5*t+1}'
    def rdP(slot, t):  return f'ds_read_b64 {v(KP,2)}, v{vKp} offset:{slot*CH+t*KVREC}'
    def rdV(slot, t, aa): return f'ds_read_b128 {v(V1 if aa else V0,4)}, v{vV} offset:{slot*CH+t*KVREC+aa*768}'
    def qk1(q, par, km=KM): return f'v_mfma_f32_32x32x16_bf16 {v(Sr(q,par),16)}, {v(km,4)}, {v(Q1(q),4)}, 0'
    def qk2(q, par, kp=KP): return f'v_mfma_f32_32x32x8_bf16 {v(Sr(q,par),16)}, {v(kp,2)}, {v(Q2(q),2)}, {v(Sr(q,par),16)}'
    def pv(q, aa): return f'v_mfma_f32_32x32x16_bf16 {v(Or(q),16)}, {v(V1 if aa else V0,4)}, {v(Pr(q)+4*aa,4)}, {v(Or(q),16)}'
    M0, M1 = T0+8, T0+9
    def maxtree(q, par, first):
        sr = Sr(q,par); m = M0+q
        L = []
        if first: L.append(f'v_max3_f32 v{m}, v{sr}, v{sr+1}, v{sr+2}'); L.append(f'v_max_f32 v{m}, v{m}, v{sr+3}'); st = 4
        else: st = 0
        for i in range(st, 16, 2): L.append(f'v_max3_f32 v{m}, v{m}, v{sr+i}, v{sr+i+1}')
        return L
    def half_max():
        a(f'''
        v_mov_b32 v{T0}, v{M0}
        v_mov_b32 v{T0+1}, v{M1}
        s_nop 1
        v_permlane32_swap_b32 v{T0}, v{M0}
        v_permlane32_swap_b32 v{T0+1}, v{M1}
        s_nop 1
        v_max_f32 v{M0}, v{M0}, v{T0}
        v_max_f32 v{M1}, v{M1}, v{T0+1}
        ''')
    def set_m():
        a(f's_mov_b32 s50, {f2u(DOFF)}\nv_cmp_lt_u32 vcc, 31, v{LANE}')
        for q in range(2):
            m = M0+q; t = T0+3*q
            a(f'''
            v_add_f32 v{m}, s50, v{m}
            v_sub_f32 v{m}, 0, v{m}
            v_cvt_pk_bf16_f32 v{t}, v{m}, v{m}
            v_and_b32 v{t+1}, 0xffff0000, v{t}
            v_sub_f32 v{m}, v{m}, v{t+1}
            v_cvt_pk_bf16_f32 v{t+1}, v{m}, v{m}
            v_and_b32 v{t+2}, 0xffff0000, v{t+1}
            v_sub_f32 v{m}, v{m}, v{t+2}
            v_cvt_pk_bf16_f32 v{m}, v{m}, 0
            v_and_b32 v{t}, 0xffff, v{t}
            v_or_b32 v{t}, v{t}, v{t+2}
            v_cndmask_b32 v{Q2(q)}, v{Q2(q)}, v{t}, vcc
            v_cndmask_b32 v{Q2(q)+1}, v{Q2(q)+1}, v{m}, vcc
            ''')
    for i in range(32): a(f'v_mov_b32 v{Or(0)+i}, 0')
    for i in range(4): a(f'v_mov_b32 v{V1+i}, 0')
    a(f'''
    v_mov_b32 v{Pr(1)+4}, 0
    v_mov_b32 v{Pr(1)+5}, 0
    s_lshl_b32 s{sT}, s{sWV}, 8
    s_xor_b32 s{sT2}, s{sT}, 1024
    v_and_b32 v{T0}, 31, v{LANE}
    v_lshlrev_b32 v{T0}, 2, v{T0}
    v_add_u32 v{T0+10}, s{sT}, v{T0}
    v_add_u32 v{T0+11}, s{sT2}, v{T0}
    v_add_u32 v{T0+10}, {L_MX}, v{T0+10}
    v_add_u32 v{T0+11}, {L_MX}, v{T0+11}
    ''')
    stamp(a, 1)
    a('s_barrier')
    stamp(a, 2)
    KM2, KP2 = T0+12, T0+16
    a(rdK(0,0)); a(rdP(0,0))
    a(rdK(0,1).replace(v(KM,4), v(KM2,4))); a(rdP(0,1).replace(v(KP,2), v(KP2,2)))
    a('s_waitcnt vmcnt(0) lgkmcnt(2)')
    a(qk1(0,0)); a(qk1(1,0)); a(qk2(0,0)); a(qk2(1,0))
    a('s_waitcnt lgkmcnt(0)')
    a(qk1(0,1,KM2)); a(qk1(1,1,KM2)); a(qk2(0,1,KP2)); a(qk2(1,1,KP2))
    a('s_nop 7')
    for x in maxtree(0,0,True) + maxtree(1,0,True): a(x)
    a('s_nop 3')
    for x in maxtree(0,1,False) + maxtree(1,1,False): a(x)
    half_max()
    a(f'''
    ds_write2_b32 v{T0+10}, v{M0}, v{M1} offset0:0 offset1:32
    s_waitcnt lgkmcnt(0)
    s_barrier
    ds_read2_b32 {v(T0,2)}, v{T0+11} offset0:0 offset1:32
    ''')
    for i in range(4): a(f'v_mov_b32 v{Sr(1,1)+12+i}, 0')
    a(f'''
    s_waitcnt lgkmcnt(0)
    v_max_f32 v{M0}, v{M0}, v{T0}
    v_max_f32 v{M1}, v{M1}, v{T0+1}
    ''')
    set_m()
    a('s_nop 1')
    a(qk1(0,0)); a(qk1(1,0)); a(qk2(0,0)); a(qk2(1,0))
    a(rdK(0,1)); a(rdP(0,1)); a(rdV(0,0,0))
    a(f's_mov_b32 s{sC}, 0\ns_nop 7\ns_nop 3')
    stamp(a, 3)
    a('.p2align 6\nL_k2_loop:')
    for jj in range(8):
        par = jj & 1; nx = 1-par
        sl = lambda d: ((jj+d)//2) % 4
        tt = lambda d: (jj+d) % 2
        e = lambda q, i: f'v_exp_f32 v{Sr(q,par)+i}, v{Sr(q,par)+i}'
        c = lambda q, p_, i: f'v_cvt_pk_bf16_f32 v{Pr(q)+i}, v{Sr(q,p_)+2*i}, v{Sr(q,p_)+2*i+1}'
        ms = [('s_waitcnt lgkmcnt(2)', qk1(0,nx), None),
              (None, pv(1,1), rdV(sl(0), tt(0), 1)),
              ('s_waitcnt lgkmcnt(2)', qk2(0,nx), None),
              ('s_waitcnt lgkmcnt(1)', pv(0,0), None),
              (None, qk1(1,nx), rdK(sl(2), tt(2))),
              ('s_waitcnt lgkmcnt(1)', pv(0,1), None),
              (None, qk2(1,nx), rdP(sl(2), tt(2))),
              (None, pv(1,0), rdV(sl(1), tt(1), 0))]
        for g in range(8):
            q = g >> 2; b = 4*(g & 3)
            w, m, r = ms[g]
            a(e(q,b));
            if w: a(w)
            a(e(q,b+1))
            a(m)
            if r: a(r)
            a(e(q,b+2)); a(e(q,b+3))
            if g == 0: a(c(1,nx,6)); a(c(1,nx,7))
            elif g == 4: a(c(0,par,6)); a(c(0,par,7))
            else: a(c(q,par,2*(g&3)-2)); a(c(q,par,2*(g&3)-1))
        if jj == 7:
            a(f's_add_u32 s{sC}, s{sC}, 1\ns_cmp_eq_u32 s{sC}, 4\ns_cbranch_scc1 L_k2_done\ns_barrier\ns_branch L_k2_loop')
        elif jj & 1: a('s_barrier')
    a('L_k2_done:')
    stamp(a, 4)
    a(f'v_cvt_pk_bf16_f32 v{Pr(1)+6}, v{Sr(1,1)+12}, v{Sr(1,1)+13}\nv_cvt_pk_bf16_f32 v{Pr(1)+7}, v{Sr(1,1)+14}, v{Sr(1,1)+15}')
    a('s_waitcnt lgkmcnt(0)\ns_nop 0')
    a(pv(1,1))
    a(f'''
    L_k2_merge:
    s_mul_i32 s{sT}, s{sWV}, 3072
    s_xor_b32 s{sT2}, s{sWV}, 4
    s_mul_i32 s{sT2}, s{sT2}, 3072
    v_lshlrev_b32 v{T0}, 4, v{LANE}
    v_add_u32 v{T0}, {L_B}, v{T0}
    v_add_u32 v{T0+1}, s{sT2}, v{T0}
    v_add_u32 v{T0}, s{sT}, v{T0}
    v_mov_b32 v{T0+2}, 0
    v_mov_b32 v{T0+3}, 0
    s_mov_b32 s50, {f2u(2.0**-8)}
    s_mov_b32 s51, {f2u(2.0**118)}
    v_mov_b32 v{T0+4}, {L_FLAG}
    v_mov_b32 v{T0+5}, 1
    s_cmp_eq_u32 s{sKH}, 0
    s_nop 3
    s_cbranch_scc1 L_k2_noswap
    ''')
    for i in range(12): a(f'v_swap_b32 v{Or(0)+i}, v{Or(1)+i}')
    a('L_k2_noswap:')
    for i in range(3): a(f'ds_write_b128 v{T0}, {v(Or(1)+4*i,4)} offset:{1024*i}')
    for i in range(12):
        a(f'v_fma_f32 v{T0+2}, abs(v{Or(0)+i}), s50, v{T0+2}\nv_fma_f32 v{T0+3}, abs(v{Or(1)+i}), s50, v{T0+3}')
    a(f'''
    v_add_f32 v{T0+2}, v{T0+2}, v{T0+3}
    v_cmp_ngt_f32 vcc, s51, v{T0+2}
    s_nop 4
    s_cbranch_vccz L_k2_safe
    ds_write_b32 v{T0+4}, v{T0+5}
    L_k2_safe:
    s_waitcnt lgkmcnt(0)
    s_barrier
    ds_read_b32 v{T0+5}, v{T0+4}
    ''')
    for i in range(3): a(f'ds_read_b128 {v(Or(1)+4*i,4)}, v{T0+1} offset:{1024*i}')
    a(f'''
    s_add_u32 s{sT}, s{sTQ}, s{sKH}
    s_lshl_b32 s{sT}, s{sT}, 5
    s_add_u32 s{sT}, s{sT}, s{sHEAD}
    s_mul_i32 s{sT}, s{sT}, 1280
    v_lshlrev_b32 v{T0+6}, 4, v{LANE}
    v_lshrrev_b32 v{T0+7}, 5, v{LANE}
    v_lshlrev_b32 v{T0+7}, 30, v{T0+7}
    v_lshl_add_u32 v{T0+7}, v{LANE}, 3, v{T0+7}
    s_waitcnt lgkmcnt(3)
    v_readfirstlane_b32 s50, v{T0+5}
    s_xor_b32 s51, s{sSEC}, 1
    s_and_b32 s50, s50, s51
    s_cbranch_scc1 L_k2_fallback
    s_waitcnt lgkmcnt(0)
    ''')
    for i in range(12): a(f'v_add_f32 v{Or(0)+i}, v{Or(0)+i}, v{Or(1)+i}')
    a(f'''
    v_mov_b32 v{T0}, v{Or(0)+8}
    v_mov_b32 v{T0+1}, v{Or(0)+8}
    s_nop 1
    v_permlane32_swap_b32 v{T0}, v{T0+1}
    s_nop 1
    v_rcp_f32 v{T0+1}, v{T0+1}
    s_nop 0
    ''')
    for i in range(12): a(f'v_mul_f32 v{Or(0)+i}, v{Or(0)+i}, v{T0+1}')
    for i in range(6): a(f'v_cvt_pk_bf16_f32 v{Or(1)+i}, v{Or(0)+2*i}, v{Or(0)+2*i+1}')
    a(f'''
    buffer_store_dwordx4 {v(Or(1),4)}, v{T0+6}, {s(sOo,4)}, s{sT} offen
    buffer_store_dwordx2 {v(Or(1)+4,2)}, v{T0+7}, {s(sOo,4)}, s{sT} offen offset:1024
    s_branch L_k2_fin
    ''')
    gK, gP, gV = T0+10, T0+11, T0+12
    a(f'''
    L_k2_fallback:
    s_waitcnt lgkmcnt(0)
    s_mov_b32 s{sSEC}, 1
    s_mul_i32 s{sT}, s{sKH}, {2*KVREC}
    v_subrev_u32 v{gK}, s{sT}, v{vKe}
    v_subrev_u32 v{gP}, s{sT}, v{vKp}
    v_subrev_u32 v{gV}, s{sT}, v{vV}
    v_cmp_lt_u32 vcc, 31, v{LANE}
    v_mov_b32 v{M0}, 0xff800000
    v_mov_b32 v{M1}, 0xff800000
    ''')
    for q in range(2):
        for i in range(2): a(f'v_cndmask_b32 v{Q2(q)+i}, v{Q2(q)+i}, 0, vcc'.replace(', 0, vcc', f', v{T0+13}, vcc') if False else f'v_cndmask_b32_e64 v{Q2(q)+i}, v{Q2(q)+i}, 0, vcc')
    def ldK():
        a(f'''
        buffer_load_dwordx2 {v(KM,2)}, v{gK}, {s(sKV,4)}, s{sT} offen
        buffer_load_dwordx2 {v(KM+2,2)}, v{gK}, {s(sKV,4)}, s{sT} offen offset:512
        buffer_load_dwordx2 {v(KP,2)}, v{gP}, {s(sKV,4)}, s{sT} offen
        ''')
    a(f's_mov_b32 s{sT}, s{sHB}\ns_mov_b32 s{sC}, 0\nL_k2_fb1:')
    ldK()
    a('s_waitcnt vmcnt(0)')
    a(qk1(0,0)); a(qk1(1,0)); a(qk2(0,0)); a(qk2(1,0))
    a('s_nop 15')
    for x in maxtree(0,0,False) + maxtree(1,0,False): a(x)
    a(f'''
    s_add_u32 s{sT}, s{sT}, {KVREC}
    s_add_u32 s{sC}, s{sC}, 1
    s_cmp_lt_u32 s{sC}, 64
    s_cbranch_scc1 L_k2_fb1
    ''')
    half_max()
    set_m()
    for i in range(32): a(f'v_mov_b32 v{Or(0)+i}, 0')
    a(f'''
    s_mul_i32 s{sT}, s{sKH}, {32*KVREC}
    s_add_u32 s{sT}, s{sT}, s{sHB}
    s_mov_b32 s{sC}, 0
    L_k2_fb2:
    ''')
    ldK()
    a(f'''
    buffer_load_dwordx4 {v(V0,4)}, v{gV}, {s(sKV,4)}, s{sT} offen
    buffer_load_dwordx4 {v(V1,4)}, v{gV}, {s(sKV,4)}, s{sT} offen offset:768
    s_waitcnt vmcnt(0)
    ''')
    a(qk1(0,0)); a(qk1(1,0)); a(qk2(0,0)); a(qk2(1,0))
    a('s_nop 15')
    for q in range(2):
        for i in range(16): a(f'v_exp_f32 v{Sr(q,0)+i}, v{Sr(q,0)+i}')
    for q in range(2):
        for i in range(8): a(f'v_cvt_pk_bf16_f32 v{Pr(q)+i}, v{Sr(q,0)+2*i}, v{Sr(q,0)+2*i+1}')
    a('s_nop 1')
    a(pv(0,0)); a(pv(1,0)); a(pv(0,1)); a(pv(1,1))
    a(f'''
    s_add_u32 s{sT}, s{sT}, {KVREC}
    s_add_u32 s{sC}, s{sC}, 1
    s_cmp_lt_u32 s{sC}, 32
    s_cbranch_scc1 L_k2_fb2
    s_branch L_k2_merge
    ''')
    ACC, WF, HF = 0, 80, 100
    vW, vKVo, vH, vWr, vHr = 104, 109, 112, 113, 114
    TB = 116
    sV, sTT, sCG, sWO, sHO, sLB, sM = 47, 48, 49, 50, 51, 52, 53
    a(f'''
    L_k2_B:
    s_sub_u32 s{sV}, s{sWV}, 8
    ''')
    for i in range(3):
        a(f'''
        s_mul_i32 s{sT}, s{sV}, 3
        s_add_u32 s{sT}, s{sT}, {i}
        s_min_u32 s{sT}, s{sT}, 10
        s_lshl_b32 s{54+i}, s{sT}, 10
        s_lshl_b32 s{sT}, s{sT}, 6
        v_add_u32 v{TB}, s{sT}, v{LANE}
        v_cmp_lt_u32 vcc, 351, v{TB}
        v_lshlrev_b32 v{TB+1}, 4, v{TB}
        v_add_u32 v{TB+2}, {30*KVREC}, v{TB+1}
        v_cndmask_b32 v{vKVo+i}, v{TB+1}, v{TB+2}, vcc
        ''')
    def kvdma():
        for i in range(3):
            a(f's_add_u32 m0, s{sKVS}, s{54+i}\ns_nop 0\nbuffer_load_dwordx4 v{vKVo+i}, {s(sKV,4)}, s{sKVO} offen lds')
        a(f'''
        s_add_u32 s{sKVO}, s{sKVO}, {2*KVREC}
        s_add_u32 s{sKVS}, s{sKVS}, {CH}
        s_cmp_eq_u32 s{sKVS}, {4*CH}
        s_cselect_b32 s{sKVS}, 0, s{sKVS}
        ''')
    a(f's_mov_b32 s{sKVO}, s{sHB}\ns_mov_b32 s{sKVS}, 0')
    kvdma(); kvdma()
    a(f'''
    s_mov_b32 s{sW2}, s40
    s_mov_b32 s{sW2+1}, s41
    s_mov_b32 s{sW2+2}, {FF*D*2}
    s_mov_b32 s{sW2+3}, 0x20000
    s_add_u32 s{sHh}, s42, {WS_H}
    s_addc_u32 s{sHh+1}, s43, 0
    s_mov_b32 s{sHh+2}, {WS_H_SZ}
    s_mov_b32 s{sHh+3}, 0x20000
    s_add_u32 s{sY}, s42, {WS_Y}
    s_addc_u32 s{sY+1}, s43, 0
    s_mov_b32 s{sY+2}, {WS_Y_SZ}
    s_mov_b32 s{sY+3}, 0x20000
    s_lshr_b32 s{sTT}, s{sXCD}, 1
    s_lshl_b32 s{sTT}, s{sTT}, 4
    s_lshr_b32 s{sT}, s{sJ}, 1
    s_add_u32 s{sTT}, s{sTT}, s{sT}
    s_and_b32 s{sCG}, s{sXCD}, 1
    s_lshl_b32 s{sCG}, s{sCG}, 1
    s_and_b32 s{sT}, s{sJ}, 1
    s_add_u32 s{sCG}, s{sCG}, s{sT}
    s_mul_i32 s{sWO}, s{sV}, {432*1280}
    s_mul_i32 s{sT}, s{sCG}, 320
    s_add_u32 s{sWO}, s{sWO}, s{sT}
    s_mul_i32 s{sHO}, s{sTT}, {432*256}
    s_mul_i32 s{sT}, s{sV}, {108*256}
    s_add_u32 s{sHO}, s{sHO}, s{sT}
    s_mul_i32 s{sLB}, s{sV}, {BW}
    s_add_u32 s{sLB}, s{sLB}, {L_B}
    v_lshlrev_b32 v{vH}, 4, v{LANE}
    v_mov_b32 v{TB}, 0
    v_mov_b32 v{TB+1}, {L_FLAG}
    ds_write_b32 v{TB+1}, v{TB}
    ''')
    for m in range(5):
        a(f'''
        v_add_u32 v{TB}, {64*m}, v{LANE}
        v_mul_u32_u24 v{TB+1}, 3277, v{TB}
        v_lshrrev_b32 v{TB+1}, 16, v{TB+1}
        v_mul_u32_u24 v{TB+2}, 20, v{TB+1}
        v_sub_u32 v{TB}, v{TB}, v{TB+2}
        v_mul_u32_u24 v{TB+1}, 1280, v{TB+1}
        v_lshl_add_u32 v{vW+m}, v{TB}, 4, v{TB+1}
        ''')
    def stepdma(slot):
        if NOB: return
        for m in range(5):
            a(f's_add_u32 m0, s{sLB}, {slot*BSL+1024*m}\ns_nop 0\nbuffer_load_dwordx4 v{vW+m}, {s(sW2,4)}, s{sWO} offen lds')
        a(f's_add_u32 m0, s{sLB}, {slot*BSL+5120}\ns_add_u32 s{sWO}, s{sWO}, {16*1280}\nbuffer_load_dwordx4 v{vH}, {s(sHh,4)}, s{sHO} offen lds')
        a(f's_add_u32 s{sHO}, s{sHO}, 1024')
    def W(n): return f's_waitcnt vmcnt({n if not NOB else 0})'
    a('s_waitcnt vmcnt(0) lgkmcnt(0)')
    stamp(a, 1)
    a('s_barrier')
    stepdma(0); kvdma(); stepdma(1); stepdma(2)
    a(f'''
    v_lshrrev_b32 v{TB}, 5, v{LANE}           ; h
    v_bfe_u32 v{TB+1}, v{LANE}, 2, 2          ; r
    v_lshl_add_u32 v{TB+1}, v{TB}, 2, v{TB+1}
    v_mul_u32_u24 v{TB+1}, 320, v{TB+1}
    v_bfe_u32 v{TB+2}, v{LANE}, 4, 1
    v_lshl_add_u32 v{TB+1}, v{TB+2}, 5, v{TB+1}
    v_and_b32 v{TB+2}, 3, v{LANE}
    v_lshl_add_u32 v{TB+1}, v{TB+2}, 3, v{TB+1}
    v_add_u32 v{vWr}, s{sLB}, v{TB+1}
    v_lshlrev_b32 v{TB+1}, 3, v{LANE}         ; h*256 + n*8
    v_add_u32 v{TB+1}, 5120, v{TB+1}
    v_add_u32 v{vHr}, s{sLB}, v{TB+1}
    ''')
    for i in range(80): a(f'v_mov_b32 v{ACC+i}, 0')
    def step(slot, wait, dma):
        a(W(wait))
        if NOB: return
        a(f'ds_read2st64_b64 {v(HF,4)}, v{vHr} offset0:{12*slot} offset1:{12*slot+1}')
        for t in range(5):
            for e_ in range(2):
                a(f'ds_read_b64_tr_b16 {v(WF+4*t+2*e_,2)}, v{vWr} offset:{slot*BSL+e_*2560+t*64}')
        if dma: stepdma((slot+3) % 4)
        for t in range(5):
            a(f's_waitcnt lgkmcnt({8-2*t})')
            a(f'v_mfma_f32_32x32x16_bf16 {v(ACC+16*t,16)}, {v(WF+4*t,4)}, {v(HF,4)}, {v(ACC+16*t,16)}')
    a(f's_mov_b32 s{sC}, 0\nL_k2_bloop:')
    for half in range(2):
        a('s_barrier')
        kvdma()
        step(2*half, 18, True); step(2*half+1, 15, True)
    a(f's_add_u32 s{sC}, s{sC}, 1\ns_cmp_lt_u32 s{sC}, 6\ns_cbranch_scc1 L_k2_bloop')
    a('s_barrier')
    kvdma()
    step(0, 18, False); step(1, 9, False)
    a('s_barrier')
    step(2, 3, False)
    a(f'''
    v_and_b32 v{TB}, 31, v{LANE}
    v_mul_u32_u24 v{TB}, 656, v{TB}
    v_lshrrev_b32 v{TB+1}, 5, v{LANE}
    v_lshl_add_u32 v{TB}, v{TB+1}, 4, v{TB}
    v_add_u32 v{TB}, s{sLB}, v{TB}
    s_nop 7
    s_nop 3
    ''')
    for t in range(5):
        for j in range(4):
            a(f'ds_write_b128 v{TB}, {v(ACC+16*t+4*j,4)} offset:{t*128+j*32}')
    a('s_waitcnt vmcnt(0) lgkmcnt(0)\ns_barrier')
    for rnd in range(5):
        R = 16*rnd
        a(f'''
        v_add_u32 v{TB}, {64*rnd}, v{LANE}
        v_mul_u32_u24 v{TB+1}, 1639, v{TB}
        v_lshrrev_b32 v{TB+1}, 16, v{TB+1}          ; row
        v_mul_u32_u24 v{TB+2}, 40, v{TB+1}
        v_sub_u32 v{TB}, v{TB}, v{TB+2}             ; c4
        v_lshl_add_u32 v{TB+1}, s{sV}, 3, v{TB+1}   ; n
        v_mul_u32_u24 v{TB+2}, 656, v{TB+1}
        v_lshl_add_u32 v{TB+2}, v{TB}, 4, v{TB+2}
        v_add_u32 v{TB+2}, {L_B}, v{TB+2}
        v_add_u32 v{TB+3}, {2*BW}, v{TB+2}
        ds_read_b128 {v(R,4)}, v{TB+2}
        ds_read_b128 {v(R+4,4)}, v{TB+2} offset:{BW}
        ds_read_b128 {v(R+8,4)}, v{TB+3}
        ds_read_b128 {v(R+12,4)}, v{TB+3} offset:{BW}
        v_and_b32 v{TB+2}, 1, v{TB+1}
        v_lshrrev_b32 v{TB+1}, 1, v{TB+1}
        v_lshl_add_u32 v{TB+1}, v{TB+2}, 4, v{TB+1}
        v_mul_u32_u24 v{TB+1}, 1280, v{TB+1}
        v_lshl_add_u32 v{WF+rnd}, v{TB}, 3, v{TB+1}
        ''')
    a(f'''
    s_mul_i32 s{sT}, s{sTT}, {32*1280}
    s_mul_i32 s{sT2}, s{sCG}, 320
    s_add_u32 s{sT}, s{sT}, s{sT2}
    s_waitcnt lgkmcnt(0)
    ''')
    for rnd in range(5):
        R = 16*rnd
        for i in range(4): a(f'v_add_f32 v{R+i}, v{R+i}, v{R+4+i}')
        for i in range(4): a(f'v_add_f32 v{R+8+i}, v{R+8+i}, v{R+12+i}')
        for i in range(4): a(f'v_add_f32 v{R+i}, v{R+i}, v{R+8+i}')
        a(f'v_cvt_pk_bf16_f32 v{R+4}, v{R}, v{R+1}\nv_cvt_pk_bf16_f32 v{R+5}, v{R+2}, v{R+3}')
        a(f'buffer_store_dwordx2 {v(R+4,2)}, v{WF+rnd}, {s(sY,4)}, s{sT} offen')
    a(f'''
    s_barrier
    v_mov_b32 v{TB+1}, {L_FLAG}
    s_barrier
    ds_read_b32 v{TB}, v{TB+1}
    s_waitcnt lgkmcnt(0)
    v_readfirstlane_b32 s{sT}, v{TB}
    s_cmp_eq_u32 s{sT}, 0
    s_cbranch_scc1 L_k2_fin
    s_barrier
    L_k2_fin:
    ''')
    stamp(a, 12)
    if STAMPS: a('s_waitcnt vmcnt(0)')
    stamp(a, 13); stamp(a, 15, True)
    stamp_dump(a, sWV, 16, 42, 1, 162)
    a('L_k2_end:\ns_endpgm')
    return a.text(), kernel_desc(name, 168).replace('denorm_mode_32 3', 'denorm_mode_32 0')
```

```python
from asmlib import *
K3_GRID = 256
K3_THREADS = 256
RS = 336
L_P = 0
K3_LDS = 640*160

def gen_k3(name='k3_kernel'):
    a = Asm()
    a(kernel_header(name))
    sOo, sWo, sX, sY, sOut = 8, 12, 16, 20, 24
    sWV, sTB, sCG, sT, sT2, sKH, sTH = 28, 29, 30, 31, 32, 33, 34
    ACC, OF, WF, XY, vW, TB, LANE = 0, 40, 120, 140, 160, 166, 175
    stamp(a, 0); stamp(a, 14, True)
    a(f'''
    s_cmp_ge_u32 s2, 256
    s_cbranch_scc1 L_k3_end
    s_load_dwordx2 s[42:43], s[0:1], 64     ; ws
    s_load_dwordx2 s[4:5], s[0:1], 0        ; x
    s_load_dwordx2 s[6:7], s[0:1], 16       ; wo
    s_load_dwordx2 s[40:41], s[0:1], 48     ; out
    v_lshrrev_b32 v1, 6, v0
    v_and_b32 v{LANE}, 63, v0
    s_and_b32 s{sT}, s2, 7
    s_lshr_b32 s{sT2}, s2, 3
    v_readfirstlane_b32 s{sWV}, v1
    s_lshr_b32 s{sTB}, s{sT}, 1
    s_lshl_b32 s{sTB}, s{sTB}, 3
    s_lshr_b32 s35, s{sT2}, 2
    s_add_u32 s{sTB}, s{sTB}, s35
    s_and_b32 s{sCG}, s{sT}, 1
    s_lshl_b32 s{sCG}, s{sCG}, 2
    s_and_b32 s35, s{sT2}, 3
    s_add_u32 s{sCG}, s{sCG}, s35
    s_lshr_b32 s{sKH}, s{sWV}, 1
    s_and_b32 s{sTH}, s{sWV}, 1
    v_and_b32 v{TB}, 15, v{LANE}             ; tau
    v_lshrrev_b32 v{TB+1}, 4, v{LANE}        ; g
    v_lshrrev_b32 v{TB+2}, 1, v{TB+1}
    v_mul_u32_u24 v{TB+2}, 1280, v{TB+2}
    v_and_b32 v{TB+3}, 1, v{TB+1}
    v_lshl_add_u32 v{TB+2}, v{TB+3}, 9, v{TB+2}
    v_lshl_add_u32 v{TB+4}, v{TB}, 4, v{TB+2}
    v_mul_u32_u24 v{TB+2}, 2560, v{TB+1}
    v_lshl_add_u32 v{TB+5}, v{TB}, 3, v{TB+2}     ; p4 offset
    s_lshl_b32 s35, s{sTB}, 1
    s_add_u32 s35, s35, s{sTH}
    s_lshl_b32 s35, s35, 1
    s_add_u32 s35, s35, s{sKH}
    s_mul_i32 s35, s35, {16*1280}
    s_waitcnt lgkmcnt(0)
    s_add_u32 s{sOo}, s42, {WS_O}
    s_addc_u32 s{sOo+1}, s43, 0
    s_mov_b32 s{sOo+2}, {WS_O_SZ}
    s_mov_b32 s{sOo+3}, 0x20000
    s_mov_b32 s{sWo}, s6
    s_mov_b32 s{sWo+1}, s7
    s_mov_b32 s{sWo+2}, {D*D*2}
    s_mov_b32 s{sWo+3}, 0x20000
    ''')
    def oloads(stage):
        for u in range(4):
            a(f's_add_u32 s36, s35, {(4*stage+u)*2560}')
            for b in range(2):
                a(f'buffer_load_dwordx4 {v(OF+8*(5*stage+u)+4*b,4)}, v{TB+4}, {s(sOo,4)}, s36 offen offset:{256*b}')
        a(f's_add_u32 s36, s35, {stage*8*1280+1024}')
        for b in range(2):
            for e in range(2):
                a(f'buffer_load_dwordx2 {v(OF+8*(5*stage+4)+4*b+2*e,2)}, v{TB+5}, {s(sOo,4)}, s36 offen offset:{128*b+1280*e}')
    oloads(0)
    for m in range(5):
        a(f'''
        v_add_u32 v{TB+6}, {64*m}, v{LANE}
        v_mul_u32_u24 v{TB+7}, 6554, v{TB+6}
        v_lshrrev_b32 v{TB+7}, 16, v{TB+7}
        v_mul_u32_u24 v{TB+8}, 10, v{TB+7}
        v_sub_u32 v{TB+6}, v{TB+6}, v{TB+8}
        v_mul_u32_u24 v{TB+7}, 1280, v{TB+7}
        v_lshl_add_u32 v{vW+m}, v{TB+6}, 4, v{TB+7}
        ''')
    a(f's_mul_i32 s39, s{sCG}, 160')
    def wgroup(i):
        a(f'''
        s_add_u32 s36, s{sWV}, {4*i}            ; G
        s_cmp_ge_u32 s36, 10
        s_cselect_b32 s37, 160, 0
        s_cselect_b32 s38, 10, 0
        s_sub_u32 s36, s36, s38
        s_cmp_ge_u32 s36, 5
        s_cselect_b32 s38, {320-160}, 0
        s_add_u32 s37, s37, s38
        s_lshl_b32 s36, s36, 5
        s_add_u32 s37, s37, s36                 ; row0
        s_mul_i32 s36, s37, 1280
        s_add_u32 s36, s36, s39
        s_mul_i32 s37, s37, 160
        ''')
        for m in range(5):
            a(f's_add_u32 m0, s37, {1024*m}\ns_nop 0\nbuffer_load_dwordx4 v{vW+m}, {s(sWo,4)}, s36 offen lds')
    for i in range(3): wgroup(i)
    oloads(1)
    for i in range(3,5): wgroup(i)
    a(f'''
    s_mov_b32 s{sX}, s4
    s_mov_b32 s{sX+1}, s5
    s_mov_b32 s{sX+2}, {S*D*2}
    s_mov_b32 s{sX+3}, 0x20000
    s_add_u32 s{sY}, s42, {WS_Y}
    s_addc_u32 s{sY+1}, s43, 0
    s_mov_b32 s{sY+2}, {WS_Y_SZ}
    s_mov_b32 s{sY+3}, 0x20000
    s_mov_b32 s{sOut}, s40
    s_mov_b32 s{sOut+1}, s41
    s_mov_b32 s{sOut+2}, {S*D*2}
    s_mov_b32 s{sOut+3}, 0x20000
    s_mul_i32 s38, s{sTB}, {64*1280}
    s_add_u32 s38, s38, s39
    ''')
    GO, LO = 176, 181
    for r in range(5):
        a(f'''
        v_add_u32 v{TB+6}, {256*r}, v0
        v_mul_u32_u24 v{TB+7}, 3277, v{TB+6}
        v_lshrrev_b32 v{TB+7}, 16, v{TB+7}
        v_mul_u32_u24 v{TB+8}, 20, v{TB+7}
        v_sub_u32 v{TB+6}, v{TB+6}, v{TB+8}         ; c4
        v_mul_u32_u24 v{TB+8}, {RS}, v{TB+7}
        v_lshl_add_u32 v{LO+r}, v{TB+6}, 4, v{TB+8}
        v_and_b32 v{TB+8}, 1, v{TB+7}
        v_lshlrev_b32 v{TB+8}, 4, v{TB+8}
        v_bfe_u32 v{GO+r}, v{TB+7}, 1, 4
        v_and_b32 v{TB+7}, 32, v{TB+7}
        v_add3_u32 v{TB+7}, v{TB+7}, v{TB+8}, v{GO+r}
        v_mul_u32_u24 v{TB+7}, 1280, v{TB+7}
        v_lshl_add_u32 v{GO+r}, v{TB+6}, 3, v{TB+7}
        buffer_load_dwordx2 {v(XY+4*r,2)}, v{GO+r}, {s(sX,4)}, s38 offen
        buffer_load_dwordx2 {v(XY+4*r+2,2)}, v{GO+r}, {s(sY,4)}, s38 offen
        ''')
    vA, vP = TB+4, TB+5
    a(f'''
    s_mul_i32 s36, s{sKH}, {320*160}
    v_lshrrev_b32 v{TB+2}, 1, v{TB+1}
    v_mul_u32_u24 v{TB+2}, 20, v{TB+2}
    v_lshl_add_u32 v{TB+2}, v{TB+3}, 2, v{TB+2}
    v_lshrrev_b32 v{TB+6}, 2, v{TB}              ; r
    v_add_u32 v{TB+2}, v{TB+2}, v{TB+6}
    v_mul_u32_u24 v{TB+2}, 160, v{TB+2}
    v_and_b32 v{TB+7}, 3, v{TB}
    v_lshl_add_u32 v{TB+7}, v{TB+7}, 3, s36
    v_add_u32 v{vA}, v{TB+2}, v{TB+7}
    v_mul_u32_u24 v{TB+2}, 40, v{TB+1}
    v_add3_u32 v{TB+2}, v{TB+2}, v{TB+6}, 16
    v_mul_u32_u24 v{TB+2}, 160, v{TB+2}
    v_add_u32 v{vP}, v{TB+2}, v{TB+7}
    ''')
    for i in range(40): a(f'v_mov_b32 v{ACC+i}, 0')
    def reads(st):
        stage, u = divmod(st, 5)
        L = []
        for ct in range(5):
            for e in range(2):
                if u < 4: L.append(f'ds_read_b64_tr_b16 {v(WF+4*ct+2*e,2)}, v{vA} offset:{(160*stage+40*u+8*e)*160+32*ct}')
                else: L.append(f'ds_read_b64_tr_b16 {v(WF+4*ct+2*e,2)}, v{vP} offset:{(160*stage+20*e)*160+32*ct}')
        return L
    stamp(a, 1)
    for stage in range(2):
        a(f's_waitcnt vmcnt({32 if stage == 0 else 10})\ns_barrier')
        stamp(a, 2+stage)
        for x in reads(5*stage): a(x)
        for st in range(5*stage, 5*stage+5):
            nxt = reads(st+1) if st % 5 != 4 else None
            for ct in range(5):
                a(f's_waitcnt lgkmcnt({8 if nxt else 8-2*ct})')
                for b in range(2):
                    d = v(ACC+4*(5*b+ct),4)
                    a(f'v_mfma_f32_16x16x32_bf16 {d}, {v(WF+4*ct,4)}, {v(OF+8*st+4*b,4)}, {d}')
                if nxt: a(nxt[2*ct]); a(nxt[2*ct+1])
    stamp(a, 4)
    a(f'''
    s_lshl_b32 s36, s{sKH}, 6
    s_lshl_b32 s37, s{sTH}, 5
    s_add_u32 s36, s36, s37
    v_add_u32 v{TB+2}, s36, v{TB}
    v_mul_u32_u24 v{TB+2}, {RS}, v{TB+2}
    v_lshl_add_u32 v{TB+2}, v{TB+1}, 4, v{TB+2}
    s_nop 1
    s_barrier
    ''')
    for b in range(2):
        for ct in range(5):
            a(f'ds_write_b128 v{TB+2}, {v(ACC+4*(5*b+ct),4)} offset:{b*16*RS+ct*64}')
    a('s_waitcnt lgkmcnt(0)\ns_barrier')
    for r in range(5):
        a(f'ds_read_b128 {v(8*r,4)}, v{LO+r}\nds_read_b128 {v(8*r+4,4)}, v{LO+r} offset:{64*RS}')
    a('s_waitcnt vmcnt(0)')
    for r in range(5):
        U = OF + 8*r
        for j in range(2):
            a(f'''
            v_lshlrev_b32 v{U+2*j}, 16, v{XY+4*r+j}
            v_and_b32 v{U+2*j+1}, 0xffff0000, v{XY+4*r+j}
            v_lshlrev_b32 v{U+4+2*j}, 16, v{XY+4*r+2+j}
            v_and_b32 v{U+4+2*j+1}, 0xffff0000, v{XY+4*r+2+j}
            ''')
        for i in range(4): a(f'v_add_f32 v{U+i}, v{U+i}, v{U+4+i}')
    for r in range(5):
        U = OF + 8*r
        a(f's_waitcnt lgkmcnt({8-2*r})')
        for i in range(4): a(f'v_add_f32 v{8*r+i}, v{8*r+i}, v{8*r+4+i}')
        for i in range(4): a(f'v_add_f32 v{8*r+i}, v{8*r+i}, v{U+i}')
        a(f'v_cvt_pk_bf16_f32 v{8*r+4}, v{8*r}, v{8*r+1}\nv_cvt_pk_bf16_f32 v{8*r+5}, v{8*r+2}, v{8*r+3}')
        a(f'buffer_store_dwordx2 {v(8*r+4,2)}, v{GO+r}, {s(sOut,4)}, s38 offen')
    stamp(a, 12)
    if STAMPS: a('s_waitcnt vmcnt(0)')
    stamp(a, 13); stamp(a, 15, True)
    stamp_dump(a, sWV, 16, 42, 2, 186)
    a('L_k3_end:\ns_endpgm')
    return a.text(), kernel_desc(name, 192)
```

```python
import sys, importlib
from asmlib import *
HDR = open('parallel_sum__mha_block__dense_activation_relu__prompt.s.ref').read().split('; Override')[0]
def build(kernels):
    out = HDR
    for (name, g, b, lds, t, d) in kernels:
        out += f'; @launch kernel={name} grid=({g},1,1) block=({b},1,1) lds={lds}\n'
    out += '.amdgcn_target "amdgcn-amd-amdhsa--gfx950"\n'
    seen = set()
    for (name, g, b, lds, t, d) in kernels:
        if name in seen: continue
        seen.add(name); out += t
    seen = set()
    for (name, g, b, lds, t, d) in kernels:
        if name in seen: continue
        seen.add(name); out += d
    return out
if __name__ == '__main__':
    which = sys.argv[1]; path = sys.argv[2]
    ks = []
    if '1' in which:
        import k1; t, d = k1.gen_k1(); ks.append(('k1_kernel', 256, 512, k1.K1_LDS, t, d))
    if '2' in which:
        import k2; t, d = k2.gen_k2(); ks.append(('k2_kernel', 256, k2.K2_THREADS, k2.K2_LDS, t, d))
    if '3' in which:
        import k3; t, d = k3.gen_k3(); ks.append(('k3_kernel', k3.K3_GRID, k3.K3_THREADS, k3.K3_LDS, t, d))
    open(path, 'w').write(build(ks))
```

```python
class Asm:
    def __init__(self):
        self.lines = []
        self._lab = 0
    def __call__(self, s=''):
        for l in s.split('\n'):
            l = l.strip()
            if not l: continue
            if l.endswith(':') or l.startswith('.') or l.startswith(';'):
                self.lines.append(l)
            else:
                self.lines.append('    ' + l)
    def label(self, base):
        self._lab += 1
        return f'L_{base}_{self._lab}'
    def text(self):
        return '\n'.join(self.lines) + '\n'

def v(a, n=1):
    return f'v{a}' if n == 1 else f'v[{a}:{a+n-1}]'
def s(a, n=1):
    return f's{a}' if n == 1 else f's[{a}:{a+n-1}]'

def kernel_header(name):
    return f""".text
.globl {name}
.p2align 8
.type {name},@function
{name}:
"""
def kernel_desc(name, vgpr, sgpr=102, accum=None):
    accum = accum if accum is not None else (vgpr + 3)//4*4
    return f""".section .rodata,"a"
.p2align 6
.amdhsa_kernel {name}
  .amdhsa_next_free_vgpr {vgpr}
  .amdhsa_next_free_sgpr {sgpr}
  .amdhsa_accum_offset {accum}
  .amdhsa_group_segment_fixed_size 0
  .amdhsa_kernarg_size 72
  .amdhsa_user_sgpr_count 2
  .amdhsa_user_sgpr_kernarg_segment_ptr 1
  .amdhsa_system_sgpr_workgroup_id_x 1
  .amdhsa_float_denorm_mode_32 3
.end_amdhsa_kernel
"""
def interleave(main, fill, start=0, every=1):
    out = []; fi = 0
    for i, m in enumerate(main):
        out.append(m)
        if i >= start and (i - start) % every == 0 and fi < len(fill):
            out.append(fill[fi]); fi += 1
    out += fill[fi:]
    return out

S, D, H, DH, FF = 2048, 640, 32, 20, 1728
KVREC = 2560
WS_Q  = 0
WS_Q_SZ = H*64*1280
WS_KV = WS_Q + WS_Q_SZ
WS_KV_SZ = H*64*KVREC
WS_H  = WS_KV + WS_KV_SZ
WS_H_SZ = 64*432*256
WS_O  = WS_H + WS_H_SZ
WS_O_SZ = 64*H*1280
WS_Y  = WS_O + WS_O_SZ
WS_Y_SZ = S*D*2
WS_ST = WS_Y + WS_Y_SZ
WS_ST_SZ = S*8
WS_CP = WS_ST + WS_ST_SZ
WS_CP_SZ = 912*256
WS_F1 = WS_CP + WS_CP_SZ
WS_F2 = WS_F1 + 2048
WS_END = WS_F2 + 1024

WS_STAMP = 24<<20
import os
STAMPS = os.environ.get('STAMPS') == '1'
def stamp(a, i, real=False):
    if not STAMPS: return
    a(f's_{"memrealtime" if real or os.environ.get("RT") else "memtime"} s[{64+2*i}:{65+2*i}]')
def stamp_dump(a, wave_sgpr, n, ws_lo, kidx=0, vt=0):
    if not STAMPS: return
    a(f"""
    s_waitcnt lgkmcnt(0)
    s_add_u32 s96, s{ws_lo}, {WS_STAMP + kidx*(1<<20)}
    s_addc_u32 s97, s{ws_lo+1}, 0
    s_mov_b32 s98, 0x100000
    s_mov_b32 s99, 0x20000
    s_lshl_b32 s100, s2, 4
    s_add_u32 s100, s100, s{wave_sgpr}
    s_lshl_b32 s100, s100, 6
    s_mov_b64 exec, 1
    v_mov_b32 v{vt}, 0
    """)
    for i in range(n):
        a(f'v_mov_b32 v{vt+1}, s{64+2*i}\nbuffer_store_dword v{vt+1}, v{vt}, s[96:99], s100 offen offset:{4*i}')

def stamp_loop(a, base, cnt_sgpr, n):
    if not STAMPS: return
    a('s_waitcnt lgkmcnt(0)')
    for i in range(n-1):
        a(f's_mov_b32 s{64+2*(base+i)}, s{64+2*(base+i+1)}')
    a(f's_memtime s[{64+2*(base+n-1)}:{65+2*(base+n-1)}]')
```

```python
from asmlib import *
import math, struct, os
def f2u(x): return struct.unpack('<I', struct.pack('<f', x))[0]
E = lambda k, d: int(os.environ.get(k, d))
STOP = E('KF_STOP', 0)
HST = E('KF_HST', 0)
PF = E('KF_PF', 1)
CPF = E('KF_CPF', 1)
NW = 12 if PF else 11

KF_THREADS = 512
XSZ = 192*128; WSZ = 64*320; SLOT = XSZ + WSZ
TI = 3072; CH = 4*TI; L_B = 4*CH; BSL = 9216; BW = 3*BSL; RS = 336
L_ST = L_B + 4*BW
L_STI, L_STA, L_STB, L_CF = 0, 1536, 2304, 3072
L_CP = 3*SLOT
KF_LDS = L_ST + 3712
QSCALE = math.log2(math.e)/math.sqrt(20.0)
DOFF = 88.0
ONE = 0x3f803f80
SPIN = 1 << 15
SC = 'sc1'

def gen_kf(name):
    a = Asm()
    a(kernel_header(name))
    pX, pWQ, pWO, pWS, pW1, pW2, pOUT, pDBG = 4, 6, 40, 42, 56, 58, 60, 62
    R0, R1, R2, R3, R4, R5 = 8, 12, 16, 20, 24, 28
    sWV, sMB, sCG, sTY, sXCD, sJ = 32, 33, 34, 35, 36, 37
    sT, sT2 = 38, 39
    LANE = 255
    def srd(r, ptr, off, size):
        if off: a(f's_add_u32 s{r}, s{ptr}, {off}\ns_addc_u32 s{r+1}, s{ptr+1}, 0')
        else: a(f's_mov_b32 s{r}, s{ptr}\ns_mov_b32 s{r+1}, s{ptr+1}')
        a(f's_mov_b32 s{r+2}, {size}\ns_mov_b32 s{r+3}, 0x20000')
    def poll(tag, vaddr, vdat, R, want, mask, soff='0'):
        L = a.label('poll_'+tag); Ld = a.label('polled_'+tag)
        a(f'''
        s_mov_b32 exec_lo, {mask & 0xffffffff}
        s_mov_b32 exec_hi, {mask >> 32}
        s_mov_b32 s53, 0
        {L}:
        buffer_load_dword v{vdat}, v{vaddr}, {s(R,4)}, {soff} offen sc1
        s_add_u32 s53, s53, 1
        s_waitcnt vmcnt(0)
        v_cmp_ne_u32 vcc, {want}, v{vdat}
        s_cmp_gt_u32 s53, {SPIN}
        s_cbranch_scc1 {Ld}
        s_cbranch_vccz {Ld}
        s_sleep {E('KF_SLEEP', 2)}
        s_branch {L}
        {Ld}:
        s_mov_b64 exec, -1
        ''')
    stamp(a, 0); stamp(a, 14, True)
    a(f"""
    s_load_dwordx4 s[4:7], s[0:1], 0
    s_load_dwordx4 s[56:59], s[0:1], 32
    s_load_dwordx2 s[42:43], s[0:1], 64
    s_load_dwordx4 s[60:63], s[0:1], 48
    s_load_dwordx2 s[40:41], s[0:1], 16
    s_cmp_ge_u32 s2, 256
    s_cbranch_scc1 L_end
    v_lshrrev_b32 v1, 6, v0
    v_and_b32 v{LANE}, 63, v0
    s_and_b32 s{sXCD}, s2, 7
    s_lshr_b32 s{sJ}, s2, 3
    v_readfirstlane_b32 s{sWV}, v1
    s_and_b32 s44, s2, 1
    s_lshr_b32 s45, s{sXCD}, 1
    s_sub_u32 s46, 17, s44
    s_sub_u32 s47, s{sJ}, s46
    s_cmp_lt_u32 s{sJ}, s46
    s_cselect_b32 s47, s{sJ}, s47
    s_cselect_b32 s48, 33, 31
    s_cselect_b32 s49, 17, 15
    s_movk_i32 s50, 66
    s_cselect_b32 s50, 72, s50
    s_cselect_b32 s51, 0, 12
    s_mul_i32 s48, s48, s45
    s_mul_i32 s49, s49, s44
    s_add_u32 s47, s47, s48
    s_add_u32 s47, s47, s49
    s_sub_u32 s48, s47, s50
    s_cmp_lt_u32 s47, s50
    s_cselect_b32 s47, s47, s48
    s_movk_i32 s48, 205
    s_cselect_b32 s48, 171, s48
    s_cselect_b32 s49, 6, 5
    s_cselect_b32 s50, 0, 6
    s_mul_i32 s{sCG}, s47, s48
    s_lshr_b32 s{sCG}, s{sCG}, 10
    s_mul_i32 s49, s49, s{sCG}
    s_sub_u32 s{sMB}, s47, s49
    s_add_u32 s{sMB}, s{sMB}, s50
    s_add_u32 s{sCG}, s{sCG}, s51
    s_cmp_eq_u32 s{sCG}, 23
    s_cselect_b32 s48, 5, 0
    s_cselect_b32 s{sCG}, 12, s{sCG}
    s_add_u32 s{sMB}, s{sMB}, s48
    s_lshr_b32 s{sTY}, s{sCG}, 2
    s_min_u32 s{sTY}, s{sTY}, 3
    s_cmp_lt_u32 s{sWV}, 4
    s_cbranch_scc1 L_compute
    """)
    sHW, sSTR, sXO, sWO, sWST, sLX, sLW = 44, 45, 46, 47, 48, 49, 50
    vXo, vWo, vPF = 8, 14, 19
    a(f"""
    s_setprio 2
    s_sub_u32 s{sHW}, s{sWV}, 4
    v_lshrrev_b32 v2, 3, v{LANE}            ; r
    v_and_b32 v3, 7, v{LANE}                ; p
    v_lshrrev_b32 v4, 1, v2
    v_xor_b32 v4, v4, v3
    s_mul_i32 s{sT}, s{sMB}, 192
    s_mul_i32 s{sT2}, s{sHW}, 48
    s_add_u32 s{sT}, s{sT}, s{sT2}
    v_add_u32 v5, s{sT}, v2
    v_mul_u32_u24 v5, 1280, v5
    v_lshl_add_u32 v{vXo}, v4, 4, v5
    v_xor_b32 v4, 4, v4
    v_lshl_add_u32 v7, v4, 4, v5
    s_cmp_lt_u32 s{sCG}, 12
    s_movk_i32 s{sSTR}, 3456
    s_cselect_b32 s{sSTR}, 3840, s{sSTR}
    s_cselect_b32 s{sT}, 0, 12
    s_sub_u32 s{sT}, s{sCG}, s{sT}
    s_mul_i32 s{sWO}, s{sT}, 320
    s_lshl_b32 s{sWST}, s{sSTR}, 6
    s_mov_b32 s{sXO}, 0
    s_mul_i32 s{sLX}, s{sHW}, 6144
    s_mul_i32 s{sLW}, s{sHW}, 5120
    s_add_u32 s{sLW}, s{sLW}, {XSZ}
    s_mov_b32 s{R0+2}, {S*D*2}
    s_mov_b32 s{R0+3}, 0x20000
    s_mul_i32 s{R1+2}, s{sSTR}, 640
    s_mov_b32 s{R1+3}, 0x20000
    """)
    for i in range(1, 6): a(f'v_add_u32 v{vXo+i}, {10240*i-1024*(i&3)}, v{7 if i&1 else vXo}')
    for m in range(5):
        a(f"""
        v_add_u32 v2, {64*m}, v{LANE}
        v_mul_u32_u24 v3, 3277, v2
        v_lshrrev_b32 v3, 16, v3                ; row
        v_mad_i32_i24 v2, v3, -20, v2           ; p
        v_lshrrev_b32 v4, 2, v3
        v_and_b32 v4, 2, v4
        v_xor_b32 v2, v2, v4                    ; u
        v_lshl_add_u32 v3, s{sHW}, 4, v3
        v_mul_u32_u24 v3, s{sSTR}, v3
        v_lshl_add_u32 v{vWo+m}, v2, 4, v3
        """.replace('v_mad_i32_i24 v2, v3, -20, v2', 'v_mul_u32_u24 v4, 20, v3\nv_sub_u32 v2, v2, v4'))
        if m & 3: a(f'v_subrev_u32 v{vWo+m}, {1024*m}, v{vWo+m}')
    adv = f's_add_u32 s{sXO}, s{sXO}, 128\ns_add_u32 s{sWO}, s{sWO}, s{sWST}'
    def dma(lx, lw, slot):
        xs = [f'buffer_load_dwordx4 v{vXo+i}, {s(R0,4)}, s{sXO} offen offset:{1024*(i&3)} lds' for i in range(6)]
        ws = [f'buffer_load_dwordx4 v{vWo+m}, {s(R1,4)}, s{sWO} offen offset:{1024*(m&3)} lds' for m in range(5)]
        m0 = lambda r, o: f's_add_u32 m0, s{r}, {o}\ns_nop 0\n'
        return [m0(lx, slot*SLOT)+xs[0]] + xs[1:4] + [m0(lw, slot*SLOT)+ws[0]] + ws[1:4] + [m0(lx, slot*SLOT+4096)+xs[4], xs[5], m0(lw, slot*SLOT+4096)+ws[4]+'\n'+adv]
    a(f"""
    s_cmp_lt_u32 s{sCG}, 12
    s_waitcnt lgkmcnt(0)
    s_mov_b32 s{R0}, s{pX}
    s_mov_b32 s{R0+1}, s{pX+1}
    s_cselect_b32 s{R1}, s{pWQ}, s{pW1}
    s_cselect_b32 s{R1+1}, s{pWQ+1}, s{pW1+1}
    """)
    if HST == 2: stamp(a, 2)
    for x in dma(sLX, sLW, 0): a(x)
    if HST == 2: stamp(a, 3)
    sPO, sPS = 33+0, 53
    a(f"""
    s_and_b32 s{sT}, s{sHW}, 1
    s_mul_i32 s{sT}, s{sT}, 20
    s_cmp_lt_u32 s{sHW}, 2
    s_cselect_b32 s{sT2}, s{sCG}, s{sMB}
    s_mul_i32 s3, s{sT2}, 52
    s_lshr_b32 s3, s3, 8
    s_mul_i32 s3, s3, 5
    s_sub_u32 s{sT2}, s{sT2}, s3
    s_mul_i32 s{sT2}, s{sT2}, 39
    s_add_u32 s{sT}, s{sT}, s{sT2}
    v_add_u32 v2, s{sT}, v{LANE}
    v_min_u32 v2, 191, v2
    s_mul_i32 s{sT}, s{sMB}, 192
    v_add_u32 v3, s{sT}, v2
    v_mul_u32_u24 v3, 1280, v3
    v_mul_u32_u24 v4, 171, v2
    v_lshrrev_b32 v4, 9, v4
    v_mul_u32_u24 v5, 3, v4
    v_sub_u32 v5, v2, v5
    v_mul_u32_u24 v4, s{sSTR}, v4
    v_lshl_add_u32 v4, v5, 7, v4
    s_cmp_lt_u32 s{sHW}, 2
    s_cselect_b64 vcc, -1, 0
    s_cselect_b32 s{R2}, s{R0}, s{R1}
    s_cselect_b32 s{R2+1}, s{R0+1}, s{R1+1}
    s_cselect_b32 s{R2+2}, s{R0+2}, s{R1+2}
    s_mov_b32 s{R2+3}, 0x20000
    v_cndmask_b32 v{vPF}, v4, v3, vcc
    s_and_b32 s3, s{sWO}, 0xffffff80
    s_cmp_lt_u32 s{sHW}, 2
    s_cselect_b32 s{R5}, 128, s3
    s_cselect_b32 s{R5+1}, 128, s{sWST}      ; step
    v_cmp_lt_u32 vcc, 19, v{LANE}
    v_mov_b32 v2, 0x40000000
    s_nop 0
    v_cndmask_b32 v{vPF}, v{vPF}, v2, vcc
    """)
    def pf(): return f'buffer_load_dword v68, v{vPF}, {s(R2,4)}, s{R5} offen\ns_add_u32 s{R5}, s{R5}, s{R5+1}' if PF else ''
    for k in range(3): a(pf())
    if HST == 2: stamp(a, 4)
    D1 = dma(sLX, sLW, 1)
    for x in D1[:4]: a(x)
    if HST == 2: stamp(a, 5)
    vRe, vRo, vWe, vWo_ = 20, 21, 22, 23
    CA, DW, ON = 24, 44, 64
    sS1, sSL, sSN = 51, 52, 54
    a(f"""
    v_lshrrev_b32 v3, 4, v{LANE}            ; g
    v_and_b32 v2, 15, v{LANE}
    v_lshrrev_b32 v4, 2, v2                 ; r
    v_lshl_add_u32 v4, v3, 3, v4            ; 8g + r
    v_mul_u32_u24 v4, 320, v4
    v_and_b32 v6, 3, v2
    v_lshl_add_u32 v4, v6, 3, v4
    s_and_b32 s{sT}, s{sHW}, 1
    s_mul_i32 s{sT}, s{sT}, {32*320}
    s_lshr_b32 s{sT2}, s{sHW}, 1
    s_mul_i32 s3, s{sT2}, 160
    s_add_u32 s{sT}, s{sT}, s3
    s_add_u32 s{sT}, s{sT}, {XSZ}
    v_add_u32 v4, s{sT}, v4
    v_and_b32 v5, 1, v3
    v_lshlrev_b32 v5, 5, v5
    v_add_u32 v6, v4, v5
    v_sub_u32 v7, v4, v5
    s_cmp_eq_u32 s{sT2}, 0
    s_cselect_b64 vcc, -1, 0
    v_cndmask_b32 v{vRe}, v7, v6, vcc
    v_cndmask_b32 v{vRo}, v6, v7, vcc
    s_mov_b32 s{sS1}, 0
    s_mov_b32 s{sSL}, 0
    s_mov_b32 s{sSN}, {2*SLOT}
    """)
    for i in range(20): a(f'v_mov_b32 v{CA+i}, 0')
    for i in range(4): a(f'v_mov_b32 v{ON+i}, {ONE}')
    srd(R3, pWS, WS_ST, WS_END-WS_ST); srd(R4, pDBG, 0, 256)
    a(f's_waitcnt vmcnt({7 if PF else 4})')
    stamp(a, 1)
    a('s_barrier')
    if HST == 2: stamp(a, 6)
    for x in D1[4:]: a(x)
    if HST == 2: stamp(a, 7)
    XD, U = 70, 80
    a(f"""
    L_hloop:
    v_add_u32 v{vWe}, s{sSL}, v{vRe}
    v_add_u32 v{vWo_}, s{sSL}, v{vRo}
    s_add_u32 s3, s{sLX}, s{sSN}
    s_add_u32 s55, s{sLW}, s{sSN}
    """)
    for ct in range(5):
        for e in range(2): a(f'ds_read_b64_tr_b16 {v(DW+4*ct+2*e,2)}, v{vWe if ct%2==0 else vWo_} offset:{32*ct+4*e*320}')
    a(f"""
    s_cmp_ge_u32 s{sS1}, 6
    s_cbranch_scc1 L_hx_pre7
    L_hx_back:
    """)
    a(pf())
    Dl = dma(3, 55, 0)
    a(Dl[0]); a('s_waitcnt lgkmcnt(0)')
    for i in range(1, 11):
        if i % 2: a(f'v_mfma_f32_16x16x32_bf16 {v(CA+4*(i//2),4)}, {v(DW+4*(i//2),4)}, {v(ON,4)}, {v(CA+4*(i//2),4)}')
        a(Dl[i])
    a(f"""
    s_mov_b32 s{sSN}, s{sSL}
    s_add_u32 s{sSL}, s{sSL}, {SLOT}
    s_cmp_eq_u32 s{sSL}, {3*SLOT}
    s_cselect_b32 s{sSL}, 0, s{sSL}
    s_cmp_eq_u32 s{sS1}, 9
    s_cbranch_scc1 L_hdone
    """)
    if HST == 2:
        a(f's_cmp_lg_u32 s{sS1}, 0\ns_cbranch_scc1 L_nost'); stamp(a, 8); a(f's_waitcnt vmcnt({NW})'); stamp(a, 9); a('L_nost:')
    a(f"""
    s_waitcnt vmcnt({NW})
    s_cmp_eq_u32 s{sS1}, 7
    s_cbranch_scc1 L_hx_post7
    L_hx_back3:
    s_add_u32 s{sS1}, s{sS1}, 1
    """)
    if HST == 1: stamp_loop(a, 2, 0, 9)
    a('s_barrier\ns_branch L_hloop')
    a(f"""
    L_hx_pre7:
    s_mov_b32 s{R5}, 0x40000000
    s_cmp_eq_u32 s{sS1}, 6
    s_cbranch_scc1 L_hx_back
    s_cmp_eq_u32 s{sS1}, 7
    s_cbranch_scc0 L_hx_pre8
    v_and_b32 v2, 3, v{LANE}
    v_lshlrev_b32 v2, 6, v2
    buffer_load_dword v3, v2, {s(R4,4)}, 0 offen sc1
    s_branch L_hx_back
    L_hx_pre8:
    s_mov_b32 s{sXO}, 0x40000000
    s_mov_b32 s{sWO}, 0x40000000
    s_cmp_eq_u32 s{sS1}, 8
    s_cbranch_scc0 L_hx_back
    s_mul_i32 s{sT}, s{sMB}, 192
    s_mul_i32 s{sT2}, s{sHW}, 48
    s_add_u32 s{sT}, s{sT}, s{sT2}
    s_lshl_b32 s{sT}, s{sT}, 3
    v_lshlrev_b32 v2, 3, v{LANE}
    s_cmp_ge_u32 s{sMB}, 11
    s_cselect_b32 s{sT}, 0, s{sT}
    buffer_load_dwordx2 v[100:101], v2, {s(R3,4)}, s{sT} offen sc1
    s_branch L_hx_back
    L_hx_post7:
    v_cmp_ne_u32 vcc, 64, v3
    s_nop 4
    s_cbranch_vccz L_hx_back3
    """)
    poll('p0', 2, 3, R4, 64, 0xF)
    a(f"""
    s_branch L_hx_back3
    L_hdone:
    s_and_b32 s{sT}, s{sHW}, 1
    s_mul_i32 s{sT}, s{sT}, 640
    s_lshr_b32 s{sT2}, s{sHW}, 1
    s_mul_i32 s{sT2}, s{sT2}, 320
    s_add_u32 s{sT}, s{sT}, s{sT2}
    s_add_u32 s{sT}, s{sT}, {L_CP}
    v_lshrrev_b32 v3, 4, v{LANE}
    v_lshl_add_u32 v3, v3, 4, s{sT}
    """)
    for ct in range(5): a(f'ds_write_b128 v3, {v(CA+4*ct,4)} offset:{64*ct}')
    a(f"""
    s_cmp_eq_u32 s{sTY}, 0
    s_cselect_b32 s3, {f2u(QSCALE)}, 1.0
    s_mul_i32 s{sT}, s{sHW}, 48
    v_add_u32 v96, s{sT}, v{LANE}
    v_lshlrev_b32 v97, 3, v96
    v_lshlrev_b32 v96, 2, v96
    v_add_u32 v97, {L_ST}, v97
    v_add_u32 v96, {L_ST}, v96
    v_mul_f32 v100, s3, v100
    s_mov_b32 exec_hi, 0xffff
    ds_write_b64 v97, v[100:101] offset:{L_STI}
    ds_write_b32 v96, v100 offset:{L_STA}
    ds_write_b32 v96, v101 offset:{L_STB}
    s_mov_b32 exec_hi, -1
    s_mul_i32 s{sT}, s{sHW}, 160
    v_lshl_add_u32 v3, v{LANE}, 2, s{sT}
    v_add_u32 v2, {L_CP}, v3
    v_add_u32 v3, {L_ST+L_CF}, v3
    s_waitcnt lgkmcnt(0)
    """)
    stamp(a, 11 if HST else 2)
    a('s_barrier')
    a(f'ds_read2st64_b32 {v(DW,2)}, v2 offset0:0 offset1:0'.replace('ds_read2st64_b32', 'ds_read2_b32').replace('offset1:0', 'offset1:160'))
    a(f's_waitcnt lgkmcnt(0)\nv_add_f32 v{DW}, v{DW}, v{DW+1}')
    a(f"""
    s_mov_b32 exec_hi, 0xff
    ds_write_b32 v3, v{DW}
    s_mov_b32 exec_hi, -1
    s_waitcnt vmcnt(0) lgkmcnt(0)
    s_barrier
    s_setprio 0
    """)
    if not HST: stamp(a, 3)
    ACC, WF, HF = 0, 80, 120
    vW, vKVo, vH0, vH1, vWb, vHb, vWr, vHr0, vHr1 = 152, 157, 160, 161, 162, 163, 164, 165, 166
    TB = 168
    sV = sHW
    sTB, sC8, sW2O, sHO, sLB, sSD, sSR, sKVO, sKVS, sC = 45, 46, 47, 48, 49, 50, 51, 52, 54, 55
    sKVE, sLBE = 33, 34
    M1 = 0xFFFF | (0xFFFFF << 32) | (0xFF << 56)
    M2 = 0xFFF | (0xFFFFF << 16) | (0xFFFFF << 40)
    RKV, RW2, RH = R0, R1, R2
    a(f'''
    v_lshlrev_b32 v{vKVo}, 4, v{LANE}
    ''')
    for k in range(2):
        a(f'''
        v_add_u32 v{TB}, {64*k+16}, v{LANE}          ; w + 48
        v_mul_u32_u24 v{TB+1}, 2731, v{TB}
        v_lshrrev_b32 v{TB+1}, 16, v{TB+1}           ; g + 2
        v_mul_u32_u24 v{TB+2}, 24, v{TB+1}
        v_sub_u32 v{TB}, v{TB}, v{TB+2}              ; row
        v_lshrrev_b32 v{TB+2}, 2, v{TB}
        v_and_b32 v{TB}, 3, v{TB}
        v_lshlrev_b32 v{TB}, 4, v{TB}
        v_lshl_add_u32 v{TB}, v{TB+1}, 6, v{TB}
        v_lshl_add_u32 v{TB}, v{TB+2}, 8, v{TB}
        v_add_u32 v{vKVo+1+k}, {1280-128}, v{TB}
        ''')
    a(f'''
    v_cmp_gt_u32 vcc, 32, v{LANE}
    v_add_u32 v{TB+3}, 1024, v{vKVo}
    s_nop 0
    v_cndmask_b32 v{vKVo+1}, v{vKVo+1}, v{TB+3}, vcc
    s_lshr_b32 s{sT}, s{sJ}, 3
    s_lshl_b32 s{sT2}, s{sXCD}, 2
    s_add_u32 s{sT}, s{sT}, s{sT2}             ; head
    s_lshr_b32 s3, s{sT}, 3
    s_lshl_b32 s{sT}, s{sT}, 6
    s_add_u32 s{sT}, s{sT}, s{sV}
    s_mul_i32 s{sKVO}, s{sT}, {KVREC}
    s_mul_i32 s{sKVS}, s{sV}, {TI}
    s_add_u32 s{sKVE}, s{sKVS}, {4*CH}
    s_lshr_b32 s{sTB}, s{sXCD}, 1
    s_lshl_b32 s{sTB}, s{sTB}, 3
    s_lshr_b32 s{sT}, s{sJ}, 2
    s_add_u32 s{sTB}, s{sTB}, s{sT}
    s_and_b32 s{sC8}, s{sXCD}, 1
    s_lshl_b32 s{sC8}, s{sC8}, 2
    s_and_b32 s{sT}, s{sJ}, 3
    s_add_u32 s{sC8}, s{sC8}, s{sT}
    s_mul_i32 s{sT2}, s{sV}, 14
    s_cmp_eq_u32 s{sV}, 3
    s_cselect_b32 s{sT2}, 41, s{sT2}
    s_mul_i32 s{sW2O}, s{sT2}, {32*1280}
    s_mul_i32 s{sT}, s{sC8}, 160
    s_add_u32 s{sW2O}, s{sW2O}, s{sT}
    s_mul_i32 s{sHO}, s{sTB}, {2*432*256}
    s_lshl_b32 s{sT}, s{sT2}, 11
    s_add_u32 s{sHO}, s{sHO}, s{sT}
    s_mul_i32 s{sLB}, s{sV}, {BW}
    s_add_u32 s{sLB}, s{sLB}, {L_B}
    s_mov_b32 s{sSD}, s{sLB}
    s_mov_b32 s{sSR}, 0
    s_add_u32 s{sLBE}, s{sLB}, {BW}
    v_lshlrev_b32 v{vH0}, 4, v{LANE}
    v_add_u32 v{vH1}, {432*256}, v{vH0}
    ''')
    srd(RKV, pWS, WS_KV, WS_KV_SZ); srd(RW2, pW2, 0, FF*D*2); srd(RH, pWS, WS_H, WS_H_SZ)
    for m in range(5):
        a(f'''
        v_add_u32 v{TB}, {64*m}, v{LANE}
        v_mul_u32_u24 v{TB+1}, 6554, v{TB}
        v_lshrrev_b32 v{TB+1}, 16, v{TB+1}
        v_mul_u32_u24 v{TB+2}, 10, v{TB+1}
        v_sub_u32 v{TB}, v{TB}, v{TB+2}
        v_mul_u32_u24 v{TB+1}, 1280, v{TB+1}
        v_lshl_add_u32 v{vW+m}, v{TB}, 4, v{TB+1}
        ''')
    a(f'''
    v_and_b32 v{TB}, 15, v{LANE}              ; tau
    v_lshrrev_b32 v{TB+1}, 4, v{LANE}         ; g
    v_lshrrev_b32 v{TB+2}, 2, v{LANE}         ; 4g + r
    v_mul_u32_u24 v{TB+2}, 160, v{TB+2}
    v_and_b32 v{TB+3}, 3, v{LANE}
    v_lshl_add_u32 v{TB+2}, v{TB+3}, 3, v{TB+2}
    v_add_u32 v{vWb}, s{sLB}, v{TB+2}
    v_lshlrev_b32 v{TB+2}, 8, v{TB+1}
    v_lshl_add_u32 v{TB+2}, v{TB}, 3, v{TB+2}
    v_add_u32 v{TB+2}, 5120, v{TB+2}
    v_add_u32 v{vHb}, s{sLB}, v{TB+2}
    v_lshlrev_b32 v{TB+4}, 8, v{TB+1}
    v_lshl_add_u32 v{TB+4}, v{TB}, 2, v{TB+4}
    s_lshl_b32 s3, s3, 6
    s_add_u32 s3, s3, {WS_F1-WS_ST}
    v_add_u32 v{TB+4}, s3, v{TB+4}
    s_mul_i32 s{sT}, s{sTB}, 86
    s_lshr_b32 s{sT}, s{sT}, 8                ; tb / 3
    s_lshl_b32 s{sT}, s{sT}, 2
    s_add_u32 s{sT}, s{sT}, {WS_F1-WS_ST+12*64}
    v_lshl_add_u32 v{TB+5}, v{LANE}, 6, s{sT}
    ''')
    for i in range(80): a(f'v_mov_b32 v{ACC+i}, 0')
    def wparts(slot_off):
        return [f's_add_u32 m0, {slot_off}, {1024*m}\ns_nop 0\nbuffer_load_dwordx4 v{vW+m}, {s(RW2,4)}, s{sW2O} offen lds' for m in range(5)]
    def hparts(slot_off):
        L = []
        for i in range(4):
            pre = f's_add_u32 m0, {slot_off}, {5120+2048*(i>>1)}\ns_nop 0\n' if i % 2 == 0 else ''
            L.append(pre + f'buffer_load_dwordx4 v{vH1 if i>>1 else vH0}, {s(RH,4)}, s{sHO} offen offset:{1024*(i&1)} lds')
        L[-1] += f'\ns_add_u32 s{sHO}, s{sHO}, 2048'
        return L
    for k in range(3):
        a(f's_add_u32 s3, s{sLB}, {k*BSL}')
        for x in wparts('s3'): a(x)
        a(f's_add_u32 s{sW2O}, s{sW2O}, {32*1280}')
    def kvdma():
        a(f'''
        s_mov_b32 m0, s{sKVS}
        s_add_u32 s{sKVS}, s{sKVS}, {CH}
        buffer_load_dwordx4 v{vKVo}, {s(RKV,4)}, s{sKVO} offen lds
        s_add_u32 m0, m0, 1024
        s_mov_b32 exec_lo, {M1 & 0xffffffff}
        s_mov_b32 exec_hi, {M1 >> 32}
        buffer_load_dwordx4 v{vKVo+1}, {s(RKV,4)}, s{sKVO} offen lds
        s_add_u32 m0, m0, 1024
        s_mov_b32 exec_lo, {M2 & 0xffffffff}
        s_mov_b32 exec_hi, {M2 >> 32}
        buffer_load_dwordx4 v{vKVo+2}, {s(RKV,4)}, s{sKVO} offen lds
        s_mov_b64 exec, -1
        s_add_u32 s{sKVO}, s{sKVO}, {4*KVREC}
        s_cmp_eq_u32 s{sKVS}, s{sKVE}
        s_cselect_b32 s{sT}, {4*CH}, 0
        s_sub_u32 s{sKVS}, s{sKVS}, s{sT}
        ''')
    MQ = 0x7FF | (0x7FF << 16) | (0x7FF << 32)
    if not HST: stamp(a, 4)
    a('s_barrier')
    if STOP == 1: a('s_branch L_fin')
    a(f's_setprio 1\ns_cmp_lg_u32 s{sV}, 0\ns_cbranch_scc1 L_b_p2')
    poll('kv', TB+4, TB+6, R3, 1, MQ)
    a('L_b_p2:\ns_barrier')
    stamp(a, 5)
    kvdma(); kvdma()
    a('s_waitcnt vmcnt(3)\ns_setprio 0')
    stamp(a, 6)
    a('s_barrier')
    kvdma()
    a(f's_cmp_lg_u32 s{sV}, 0\ns_cbranch_scc1 L_b_ph')
    poll('h', TB+5, TB+6, R3, 1, 0x7FF)
    a('L_b_ph:\ns_waitcnt vmcnt(3)\ns_barrier')
    for x in hparts(f's{sLB}'): a(x)
    kvdma()
    for k in (1, 2):
        a(f's_add_u32 s3, s{sLB}, {k*BSL}')
        for x in hparts('s3'): a(x)
    def dmas(last=False):
        L = wparts(f's{sSD}')
        if last: L[-1] += f'\ns_cmp_ge_u32 s{sV}, 2\ns_cselect_b32 s{sHO}, 0x40000000, s{sHO}'
        L += hparts(f's{sSD}')
        L[-1] += f'''
        s_add_u32 s{sW2O}, s{sW2O}, {32*1280}
        s_add_u32 s{sSD}, s{sSD}, {BSL}
        s_cmp_eq_u32 s{sSD}, s{sLBE}
        s_cselect_b32 s{sSD}, s{sLB}, s{sSD}'''
        return L
    def reads(buf):
        L = [f'ds_read2st64_b64 {v(HF+16*buf+4*i,4)}, v{vHr1 if i & 1 else vHr0} offset0:{4*(i>>1)} offset1:{4*(i>>1)+2}' for i in range(4)]
        for ct in range(5):
            for e_ in range(2):
                L.append(f'ds_read_b64_tr_b16 {v(WF+20*buf+4*ct+2*e_,2)}, v{vWr} offset:{e_*2560+ct*32}')
        L[0] = f'''v_add_u32 v{vHr0}, s{sSR}, v{vHb}
        v_add_u32 v{vWr}, s{sSR}, v{vWb}
        s_add_u32 s{sSR}, s{sSR}, {BSL}
        v_add_u32 v{vHr1}, 128, v{vHr0}
        s_cmp_eq_u32 s{sSR}, {BW}
        s_cselect_b32 s{sSR}, 0, s{sSR}
        ''' + L[0]
        return L
    def mfmas(buf):
        return [f'v_mfma_f32_16x16x32_bf16 {v(ACC+4*(5*tb+ct),4)}, {v(WF+20*buf+4*ct,4)}, {v(HF+16*buf+4*tb,4)}, {v(ACC+4*(5*tb+ct),4)}' for ct in range(5) for tb in range(4)]
    a('s_waitcnt vmcnt(11)')
    for x in reads(0): a(x)
    def interval(buf, kv, rd, Dm, w0):
        a('s_waitcnt lgkmcnt(0)\ns_barrier')
        if kv: kvdma()
        if rd: a(f's_waitcnt vmcnt({w0})')
        R = reads(1-buf) if rd else []
        oth = []
        while R or Dm:
            if R: oth.append(R.pop(0))
            if R: oth.append(R.pop(0))
            if Dm: oth.append(Dm.pop(0))
        M = mfmas(buf)
        for i, m in enumerate(M):
            a(m)
            if oth: a(oth.pop(0))
            if len(oth) > len(M)-1-i: a(oth.pop(0))
        for x in oth: a(x)
    interval(0, True, True, dmas(), 7)
    a(f's_mov_b32 s{sC}, 0\nL_bloop:')
    interval(1, True, True, dmas(), 12); interval(0, True, True, dmas(), 12)
    a(f's_add_u32 s{sC}, s{sC}, 1\ns_cmp_lt_u32 s{sC}, 4\ns_cbranch_scc1 L_bloop')
    interval(1, True, True, dmas(), 12)
    interval(0, True, True, dmas(True), 12)
    interval(1, True, True, [], 12)
    interval(0, False, True, [], 0)
    srd(RW2, pWO, 0, D*D*2)
    a(f'''
    s_mul_i32 s{sW2O}, s{sV}, {160*1280}
    s_mul_i32 s{sT}, s{sC8}, 160
    s_add_u32 s{sW2O}, s{sW2O}, s{sT}
    s_mov_b32 s{sSD}, s{sLB}
    ''')
    def wo_group():
        L = wparts(f's{sSD}')
        L[-1] += f'\ns_add_u32 s{sW2O}, s{sW2O}, {32*1280}\ns_add_u32 s{sSD}, s{sSD}, 5120'
        return L
    interval(1, False, False, wo_group()+wo_group()+wo_group(), 0)
    a('s_barrier')
    for x in wo_group()+wo_group(): a(x)
    OF = 120; vA, vP, vOm, vOp = 200, 201, 202, 203
    RO = R2
    srd(RO, pWS, WS_O, WS_O_SZ)
    a(f'''
    v_and_b32 v{TB}, 15, v{LANE}             ; tau
    v_lshrrev_b32 v{TB+1}, 4, v{LANE}        ; g
    v_lshrrev_b32 v{TB+2}, 1, v{TB+1}
    v_and_b32 v{TB+3}, 1, v{TB+1}
    v_mul_u32_u24 v{TB+4}, 1280, v{TB+2}
    v_lshl_add_u32 v{TB+4}, v{TB+3}, 9, v{TB+4}
    v_lshl_add_u32 v{vOm}, v{TB}, 4, v{TB+4}
    v_mul_u32_u24 v{TB+4}, 2560, v{TB+1}
    v_lshl_add_u32 v{vOp}, v{TB}, 3, v{TB+4}
    v_mul_u32_u24 v{TB+2}, 20, v{TB+2}
    v_lshl_add_u32 v{TB+2}, v{TB+3}, 2, v{TB+2}
    v_lshrrev_b32 v{TB+4}, 2, v{TB}              ; r
    v_add_u32 v{TB+2}, v{TB+2}, v{TB+4}
    v_mul_u32_u24 v{TB+2}, 160, v{TB+2}
    v_and_b32 v{TB+5}, 3, v{TB}
    v_lshl_add_u32 v{TB+5}, v{TB+5}, 3, s{sLB}
    v_add_u32 v{vA}, v{TB+2}, v{TB+5}
    v_mul_u32_u24 v{TB+2}, 40, v{TB+1}
    v_add3_u32 v{TB+2}, v{TB+2}, v{TB+4}, 16
    v_mul_u32_u24 v{TB+2}, 160, v{TB+2}
    v_add_u32 v{vP}, v{TB+2}, v{TB+5}
    v_mul_u32_u24 v{TB}, {RS}, v{TB}
    v_lshl_add_u32 v{TB}, v{TB+1}, 4, v{TB}
    v_add_u32 v{204}, s{sLB}, v{TB}
    s_lshr_b32 s{sT}, s{sTB}, 2
    s_lshl_b32 s{sT}, s{sT}, 7
    s_add_u32 s{sT}, s{sT}, {WS_F2-WS_ST}
    v_lshl_add_u32 v{TB+6}, v{LANE}, 2, s{sT}
    s_mul_i32 s{sHO}, s{sTB}, {2*32*1280}
    s_mul_i32 s{sT}, s{sV}, {8*1280}
    s_add_u32 s{sHO}, s{sHO}, s{sT}
    s_setprio 1
    s_waitcnt vmcnt(0)
    ''')
    def wreads(u):
        L = []
        for ct in range(5):
            for e in range(2):
                if u < 4: L.append(f'ds_read_b64_tr_b16 {v(WF+20*(u&1)+4*ct+2*e,2)}, v{vA} offset:{(40*u+8*e)*160+32*ct}')
                else: L.append(f'ds_read_b64_tr_b16 {v(WF+20*(u&1)+4*ct+2*e,2)}, v{vP} offset:{20*e*160+32*ct}')
        return L
    for x in wreads(0): a(x)
    stamp(a, 7)
    a('s_barrier')
    if STOP == 2: a('s_branch L_fin')
    a(f's_cmp_lg_u32 s{sV}, 0\ns_cbranch_scc1 L_b_po')
    poll('o', TB+6, TB+7, R3, 1, 0xFFFFFFFF)
    a('L_b_po:\ns_barrier')
    stamp(a, 8)
    for u in range(4):
        for T_ in range(2):
            a(f's_add_u32 s3, s{sHO}, {u*2560+T_*32*1280}')
            for b in range(2):
                a(f'buffer_load_dwordx4 {v(OF+16*u+8*T_+4*b,4)}, v{vOm}, {s(RO,4)}, s3 offen offset:{256*b}')
    for T_ in range(2):
        a(f's_add_u32 s3, s{sHO}, {1024+T_*32*1280}')
        for b in range(2):
            for e in range(2):
                a(f'buffer_load_dwordx2 {v(OF+64+8*T_+4*b+2*e,2)}, v{vOp}, {s(RO,4)}, s3 offen offset:{128*b+1280*e}')
    for u in range(5):
        a(f's_waitcnt vmcnt({20-4*u if u < 4 else 0}) lgkmcnt(0)')
        if u == 0: stamp(a, 9)
        M = [f'v_mfma_f32_16x16x32_bf16 {v(ACC+4*(5*tb+ct),4)}, {v(WF+20*(u&1)+4*ct,4)}, {v(OF+16*u+4*tb,4)}, {v(ACC+4*(5*tb+ct),4)}' for tb in range(4) for ct in range(5)]
        for x in interleave(M, wreads(u+1) if u < 4 else [], 0, 1): a(x)
    stamp(a, 10)
    for tb in range(4):
        for ct in range(5):
            if tb == 3 and ct == 0: a('s_nop 0')
            a(f'ds_write_b128 v204, {v(ACC+4*(5*tb+ct),4)} offset:{tb*16*RS+ct*64}')
    a('s_waitcnt lgkmcnt(0)\ns_barrier\ns_branch L_fin')
    ACC = 0; XF = 120; WF = 168
    vXA = [208, 209]; vWA = [210, 211]; vXB = [212, 213]; vWB = [214, 215]
    VO, vSA, vCA = 216, 221, 222
    sTH, sCH, sHS, sREC, sBASE, sT0, sNCT, sSLOT, sS = 44, 45, 46, 47, 48, 49, 50, 51, 52
    RO1 = R0
    a('L_compute:')
    if CPF:
        a(f"""
        s_getpc_b64 s[44:45]
        L_pc:
        s_sub_u32 s44, s44, L_pc-{name}
        s_subb_u32 s45, s45, 0
        v_lshlrev_b32 v2, 7, v0
        v_min_u32 v2, L_end-{name}, v2
        global_load_dword v228, v2, s[44:45]
        """)
    XD, U = 226, 232
    a(f"""
    s_lshl_b32 s{sT}, s2, 3
    s_lshl_b32 s{sT2}, s{sWV}, 1
    s_add_u32 s{sT}, s{sT}, s{sT2}
    v_lshrrev_b32 v2, 5, v{LANE}
    v_add_u32 v2, s{sT}, v2                 ; row
    v_and_b32 v3, 31, v{LANE}
    v_lshlrev_b32 v225, 3, v2
    v_mul_u32_u24 v2, 1280, v2
    v_lshl_add_u32 v2, v3, 3, v2
    s_waitcnt lgkmcnt(0)
    """)
    srd(R1, pX, 0, S*D*2)
    for n in range(5): a(f'buffer_load_dwordx2 {v(168+2*n,2)}, v2, {s(R1,4)}, 0 offen offset:{256*n}')
    a(f'''
    s_and_b32 s{sTH}, s{sWV}, 1
    s_lshr_b32 s{sCH}, s{sWV}, 1
    v_and_b32 v2, 15, v{LANE}               ; tau / (4r+c)
    v_lshrrev_b32 v3, 4, v{LANE}            ; g
    s_mul_i32 s{sT}, s{sTH}, {96*128}
    v_lshrrev_b32 v4, 1, v2
    v_xor_b32 v4, v4, v3
    v_lshlrev_b32 v5, 7, v2
    v_add_u32 v5, s{sT}, v5
    v_lshl_add_u32 v{vXB[0]}, v4, 4, v5
    v_xor_b32 v4, 4, v4
    v_lshl_add_u32 v{vXB[1]}, v4, 4, v5
    v_lshrrev_b32 v4, 2, v2                 ; r
    v_lshl_add_u32 v4, v3, 3, v4            ; 8g + r
    v_mul_u32_u24 v4, 320, v4
    v_and_b32 v5, 3, v2                     ; c
    v_lshl_add_u32 v4, v5, 3, v4
    s_mul_i32 s{sT}, s{sCH}, 160
    v_add_u32 v4, s{sT}, v4
    v_and_b32 v5, 1, v3
    v_lshlrev_b32 v5, 5, v5
    v_add_u32 v6, v4, v5
    v_sub_u32 v7, v4, v5
    s_cmp_eq_u32 s{sCH}, 0
    s_cselect_b64 vcc, -1, 0
    v_cndmask_b32 v{vWB[0]}, v7, v6, vcc
    v_cndmask_b32 v{vWB[1]}, v6, v7, vcc
    v_mov_b32 v{vXA[0]}, v{vXB[0]}
    v_mov_b32 v{vXA[1]}, v{vXB[1]}
    v_mov_b32 v{vWA[0]}, v{vWB[0]}
    v_mov_b32 v{vWA[1]}, v{vWB[1]}
    s_mul_i32 s{sT0}, s{sMB}, 6
    s_mul_i32 s{sT}, s{sTH}, 3
    s_add_u32 s{sT0}, s{sT0}, s{sT}
    s_and_b32 s{sT}, s{sCG}, 3
    s_sub_u32 s{sT2}, s{sCG}, 12
    s_cmp_eq_u32 s{sTY}, 3
    s_cselect_b32 s{sT}, s{sT2}, s{sT}
    s_lshl_b32 s{sT}, s{sT}, 3
    s_lshl_b32 s{sT2}, s{sCH}, 2
    s_add_u32 s{sT}, s{sT}, s{sT2}
    s_cmp_eq_u32 s{sT}, 84
    s_cselect_b32 s{sNCT}, 3, 5
    s_cmp_eq_u32 s{sTY}, 3
    s_mov_b32 s{sHS}, {64*KVREC}
    s_mov_b32 s{sREC}, {KVREC}
    s_mov_b32 s54, {WS_KV}
    s_mov_b32 s{RO1+2}, {WS_KV_SZ}
    s_cselect_b32 s{sHS}, 1280, s{sHS}
    s_cselect_b32 s{sREC}, {432*256}, s{sREC}
    s_cselect_b32 s54, {WS_H}, s54
    s_cselect_b32 s{RO1+2}, {WS_H_SZ}, s{RO1+2}
    s_cmp_eq_u32 s{sTY}, 0
    s_cselect_b32 s{sHS}, {64*1280}, s{sHS}
    s_cselect_b32 s{sREC}, 1280, s{sREC}
    s_cselect_b32 s54, {WS_Q}, s54
    s_cselect_b32 s{RO1+2}, {WS_Q_SZ}, s{RO1+2}
    s_mul_i32 s{sBASE}, s{sT}, s{sHS}
    s_mov_b32 s{RO1+3}, 0x20000
    s_mov_b32 s{sSLOT}, 0
    s_mov_b32 s{sS}, 0
    s_mul_i32 s{sT}, s{sCH}, 320
    s_add_u32 s{sT}, s{sT}, {L_ST}
    s_cmp_eq_u32 s{sTY}, 2
    s_cbranch_scc1 L_c_setV
    s_mul_i32 s{sT2}, s{sTH}, {96*8}
    s_add_u32 s{sT2}, s{sT2}, {L_ST}
    v_lshl_add_u32 v{vSA}, v2, 3, s{sT2}
    v_lshl_add_u32 v{vCA}, v3, 4, s{sT}
    ''')
    for ct in range(5):
        a(f'''
        v_add_u32 v4, {4*ct}, v3
        v_mul_u32_u24 v5, 52, v4
        v_lshrrev_b32 v5, 8, v5
        v_mul_u32_u24 v6, 5, v5
        v_sub_u32 v4, v4, v6
        v_mul_lo_u32 v5, v5, s{sHS}
        v_lshl_add_u32 v5, v4, 8, v5
        v_lshl_add_u32 v{VO+ct}, v2, 4, v5
        ''')
    a(f'''
    s_branch L_c_set
    L_c_setV:
    s_mul_i32 s{sT2}, s{sTH}, {96*4}
    s_add_u32 s{sT2}, s{sT2}, {L_ST}
    v_lshl_add_u32 v{vSA}, v3, 4, s{sT2}
    v_lshl_add_u32 v{vCA}, v2, 2, s{sT}
    v_and_b32 v7, 3, v2
    v_lshlrev_b32 v7, 4, v7
    v_lshl_add_u32 v7, v3, 6, v7
    v_add_u32 v7, 1280, v7
    v_lshrrev_b32 v8, 2, v2
    ''')
    for ct in range(5):
        a(f'''
        v_add_u32 v4, {4*ct}, v8
        v_mul_u32_u24 v5, 52, v4
        v_lshrrev_b32 v5, 8, v5
        v_mul_u32_u24 v6, 5, v5
        v_sub_u32 v4, v4, v6
        v_mul_lo_u32 v5, v5, s{sHS}
        v_add_u32 v5, v5, v7
        v_lshl_add_u32 v{VO+ct}, v4, 8, v5
        ''')
    a('L_c_set:')
    for i in range(120): a(f'v_mov_b32 v{ACC+i}, 0')
    a(f'''
    s_add_u32 s{RO1}, s{pWS}, s54
    s_addc_u32 s{RO1+1}, s{pWS+1}, 0
    s_and_b32 s{sT}, s2, 3
    s_lshl_b32 s{sT}, s{sT}, 6
    v_min_u32 v223, 1, v{LANE}
    v_lshl_add_u32 v223, v223, 30, s{sT}
    v_mov_b32 v224, 1
    s_cmp_eq_u32 s{sWV}, 0
    s_cselect_b32 s55, 2, 63
    s_lshl_b32 s{sT}, s{sCG}, 4
    s_add_u32 s{sT}, s{sT}, s{sMB}
    s_lshl_b32 s{sT}, s{sT}, 2
    s_add_u32 s{sT}, s{sT}, {WS_F1-WS_ST}
    s_lshr_b32 s{sT2}, s{sJ}, 3
    s_lshl_b32 s3, s{sXCD}, 2
    s_add_u32 s{sT2}, s{sT2}, s3            ; head
    s_and_b32 s3, s{sJ}, 7
    s_lshl_b32 s3, s3, 5
    s_add_u32 s{sT2}, s{sT2}, s3
    s_lshl_b32 s{sT2}, s{sT2}, 2
    s_add_u32 s{sT2}, s{sT2}, {WS_F2-WS_ST}
    s_cmp_eq_u32 s{sWV}, 0
    s_cselect_b32 s{sT}, s{sT}, s{sT2}
    v_mov_b32 v226, s{sT}
    v_mov_b32 v227, 0
    s_setprio 1
    ''')
    srd(R5, pDBG, 0, 256)
    srd(R3, pWS, WS_ST, WS_END-WS_ST)
    XD, U = 168, 180
    a('s_waitcnt vmcnt(0)')
    for i in range(10):
        a(f'v_lshlrev_b32 v{U+2*i}, 16, v{XD+i}\nv_and_b32 v{U+2*i+1}, 0xffff0000, v{XD+i}')
    def red32(r, t):
        for pat in ('quad_perm:[1,0,3,2]', 'quad_perm:[2,3,0,1]', 'row_half_mirror', 'row_mirror'):
            a(f's_nop 1\nv_add_f32_dpp v{r}, v{r}, v{r} {pat} row_mask:0xf bank_mask:0xf')
        a(f'v_mov_b32 v{t}, v{r}\ns_nop 1\nv_permlane16_swap_b32 v{t}, v{r}\ns_nop 0\nv_add_f32 v{r}, v{r}, v{t}')
    p, q_ = 200, 201
    a(f'v_add_f32 v{p}, v{U}, v{U+1}\nv_add_f32 v{q_}, v{U+2}, v{U+3}')
    for i in range(4, 20, 2): a(f'v_add_f32 v{p}, v{p}, v{U+i}\nv_add_f32 v{q_}, v{q_}, v{U+i+1}')
    a(f'v_add_f32 v{p}, v{p}, v{q_}')
    red32(p, q_)
    a(f'v_mul_f32 v203, {f2u(-1.0/640)}, v{p}')
    for i in range(20): a(f'v_add_f32 v{U+i}, v203, v{U+i}')
    a(f'v_mul_f32 v{p}, v{U}, v{U}\nv_mul_f32 v{q_}, v{U+1}, v{U+1}')
    for i in range(2, 20, 2): a(f'v_fmac_f32 v{p}, v{U+i}, v{U+i}\nv_fmac_f32 v{q_}, v{U+i+1}, v{U+i+1}')
    a(f'v_add_f32 v{p}, v{p}, v{q_}')
    red32(p, q_)
    a(f"""
    v_mov_b32 v{q_}, {f2u(1e-5)}
    v_fmac_f32 v{q_}, {f2u(1.0/640)}, v{p}
    v_rsq_f32 v202, v{q_}
    s_mov_b32 exec_lo, 1
    s_mov_b32 exec_hi, 1
    buffer_store_dwordx2 v[202:203], v225, {s(R3,4)}, 0 offen {SC}
    s_mov_b32 exec_hi, 0
    buffer_store_dword v227, v226, {s(R3,4)}, 0 offen {SC}
    s_mov_b64 exec, -1
    """)
    def creads(ss, buf):
        xs = [f'ds_read_b128 {v(XF+24*buf+4*tt,4)}, v{vXA[ss]} offset:{tt*2048}' for tt in range(6)]
        ws = []
        for ct in range(5):
            for e in range(2):
                ws.append(f'ds_read_b64_tr_b16 {v(WF+20*buf+4*ct+2*e,2)}, v{vWA[ct&1]} offset:{XSZ+(32*ss+4*e)*320+32*ct}')
        return ws[0:2] + xs + ws[2:]
    def cmfmas(buf, vori):
        m = []
        for ct in range(5):
            for tt in range(6):
                d = v(ACC+4*(tt*5+ct),4); w = v(WF+20*buf+4*ct,4); x = v(XF+24*buf+4*tt,4)
                m.append(f'v_mfma_f32_16x16x32_bf16 {d}, {x}, {w}, {d}' if vori else f'v_mfma_f32_16x16x32_bf16 {d}, {w}, {x}, {d}')
        return m
    stamp(a, 1)
    a('s_barrier')
    stamp(a, 2)
    for r in creads(0,0): a(r)
    a(f's_cmp_eq_u32 s{sTY}, 2\ns_waitcnt lgkmcnt(0)\ns_cbranch_scc1 L_loopV')
    for vori in (False, True):
        L = 'L_loopV' if vori else 'L_loopN'
        a(f'.p2align 5\n{L}:')
        cnt = 0
        for ins in interleave(cmfmas(0,vori), creads(1,1), 0, 1):
            a(ins)
            if ins.startswith('v_mfma'):
                cnt += 1
                if cnt == 18: a(f's_add_u32 s{sSLOT}, s{sSLOT}, {SLOT}')
                if cnt == 19: a(f's_cmp_eq_u32 s{sSLOT}, {3*SLOT}')
                if cnt == 20: a(f's_cselect_b32 s{sSLOT}, 0, s{sSLOT}')
                if cnt == 21: a(f's_cmp_eq_u32 s{sS}, s55')
                if cnt == 22: a(f's_cselect_b32 s54, 0, 0x40000000')
                if cnt == 29: a(f'buffer_atomic_add v224, v223, {s(R5,4)}, s54 offen sc1')
                if cnt == 23: a('s_waitcnt lgkmcnt(0)')
                if cnt == 24: a('s_barrier')
                if 25 <= cnt <= 28:
                    k = cnt-25
                    a(f'v_add_u32 v{[vXA[0], vXA[1], vWA[0], vWA[1]][k]}, s{sSLOT}, v{[vXB[0], vXB[1], vWB[0], vWB[1]][k]}')
        cnt = 0
        for ins in interleave(cmfmas(1,vori), creads(0,0), 0, 1):
            a(ins)
            if ins.startswith('v_mfma'):
                cnt += 1
                if cnt == 24: a('s_waitcnt vmcnt(2)')
                if cnt == 25: a(f's_add_u32 s{sS}, s{sS}, 1')
                if cnt == 26: a(f's_cmp_lt_u32 s{sS}, 10')
                if cnt == 28: a('s_waitcnt lgkmcnt(0)')
        a(f's_cbranch_scc1 {L}')
        stamp(a, 3)
        if vori: a('s_branch L_epiV')
        else: a(f's_cmp_eq_u32 s{sTY}, 3\ns_cbranch_scc1 L_epiH\ns_branch L_epiN')
    ST, CC, OUT = 120, 132, 152
    def tile_head(tp):
        a(f'''
        s_add_u32 s{sT}, s{sT0}, {tp}
        s_cmp_ge_u32 s{sT}, 64
        s_cbranch_scc1 L_epi_done
        s_mul_i32 s{sT}, s{sT}, s{sREC}
        s_add_u32 s{sT}, s{sT}, s{sBASE}
        ''')
    for relu in (False, True):
        a('L_epiH:' if relu else 'L_epiN:')
        a('s_barrier')
        for tt in range(6): a(f'ds_read_b64 {v(ST+2*tt,2)}, v{vSA} offset:{L_STI+tt*128}')
        for ct in range(5): a(f'ds_read_b128 {v(CC+4*ct,4)}, v{vCA} offset:{L_CF+ct*64}')
        for tp in range(3):
            Lskip = a.label('epi_tp')
            tile_head(tp)
            for ct in range(5):
                if tp == 0: a(f's_waitcnt lgkmcnt({4-ct})')
                o = OUT + 4*((tp*5+ct) % 4)
                ops = [[], [], [], []]
                for b in range(2):
                    tt = 2*tp+b; ac = ACC+4*(tt*5+ct)
                    for h in range(2):
                        ops[0].append(f'v_pk_fma_f32 {v(ac+2*h,2)}, {v(CC+4*ct+2*h,2)}, {v(ST+2*tt,2)}, {v(ac+2*h,2)} op_sel:[0,1,0] op_sel_hi:[1,1,1]')
                        ops[1].append(f'v_pk_mul_f32 {v(ac+2*h,2)}, {v(ac+2*h,2)}, {v(ST+2*tt,2)} op_sel:[0,0] op_sel_hi:[1,0]')
                        ops[2].append(f'v_cvt_pk_bf16_f32 v{o+2*b+h}, v{ac+2*h}, v{ac+2*h+1}')
                        if relu: ops[3].append(f'v_pk_max_i16 v{o+2*b+h}, v{o+2*b+h}, 0')
                for x in sum(ops, []): a(x)
                if relu and ct >= 3: a(f's_cmp_le_u32 s{sNCT}, {ct}\ns_cbranch_scc1 {Lskip}')
                a(f'buffer_store_dwordx4 {v(o,4)}, v{VO+ct}, {s(RO1,4)}, s{sT} offen {SC}')
            a(f'{Lskip}:')
        a('s_branch L_epi_done')
    SA, SB, CV = 120, 168, 144
    a('L_epiV:\ns_barrier')
    for ct in range(5): a(f'ds_read_b32 v{CV+ct}, v{vCA} offset:{L_CF+ct*64}')
    for tt in range(6):
        a(f'ds_read_b128 {v(SA+4*tt,4)}, v{vSA} offset:{L_STA+tt*64}')
        a(f'ds_read_b128 {v(SB+4*tt,4)}, v{vSA} offset:{L_STB+tt*64}')
    for tp in range(3):
        tile_head(tp)
        a(f's_waitcnt lgkmcnt({8-4*tp})')
        for ct in range(5):
            o = OUT + 4*((tp*5+ct) % 4)
            cp = CV + (ct & ~1); hi = ct & 1
            ops = [[], [], []]
            for b in range(2):
                tt = 2*tp+b; ac = ACC+4*(tt*5+ct)
                for h in range(2):
                    ops[0].append(f'v_pk_fma_f32 {v(ac+2*h,2)}, {v(SB+4*tt+2*h,2)}, {v(cp,2)}, {v(ac+2*h,2)} op_sel:[0,{hi},0] op_sel_hi:[1,{hi},1]')
                    ops[1].append(f'v_pk_mul_f32 {v(ac+2*h,2)}, {v(ac+2*h,2)}, {v(SA+4*tt+2*h,2)}')
                    ops[2].append(f'v_cvt_pk_bf16_f32 v{o+2*b+h}, v{ac+2*h}, v{ac+2*h+1}')
            for x in sum(ops, []): a(x)
            a(f'buffer_store_dwordx4 {v(o,4)}, v{VO+ct}, {s(RO1,4)}, s{sT} offen {SC}')
    a('L_epi_done:')
    stamp(a, 4)
    Sr = lambda q, par: 32*q + 16*par
    Or = lambda q: 64 + 16*q
    Pr = lambda q: 96 + 8*q
    Q1 = lambda q: 112 + 6*q
    Q2 = lambda q: 116 + 6*q
    KM, V0, V1 = 124, 128, 132
    KP = lambda t: 136 + 2*(t % 4)
    vK, vV = 144, 145
    T0 = 170
    sHEAD, sTQ, sSEC, sTG, sC, sHB = 44, 45, 46, 47, 48, 49
    RQ, RKV, RO, RF = R1, R2, R3, R4
    srd(RF, pWS, WS_ST, WS_END-WS_ST); srd(RQ, pWS, WS_Q, WS_Q_SZ); srd(RKV, pWS, WS_KV, WS_KV_SZ); srd(RO, pWS, WS_O, WS_O_SZ)
    a(f'''
    s_lshr_b32 s{sT}, s{sJ}, 3
    s_lshl_b32 s{sHEAD}, s{sXCD}, 2
    s_add_u32 s{sHEAD}, s{sHEAD}, s{sT}
    s_mul_i32 s{sHB}, s{sHEAD}, {64*KVREC}
    s_and_b32 s{sTQ}, s{sJ}, 7
    s_lshl_b32 s{sTQ}, s{sTQ}, 3
    s_lshl_b32 s{sT}, s{sWV}, 1
    s_add_u32 s{sTQ}, s{sTQ}, s{sT}
    v_and_b32 v{T0}, 31, v{LANE}            ; rho / n
    v_lshrrev_b32 v{T0+1}, 5, v{LANE}       ; h
    v_subrev_u32 v{T0+2}, 16, v{T0}
    v_lshrrev_b32 v{T0+3}, 2, v{T0+2}
    v_mul_u32_u24 v{T0+3}, 20, v{T0+3}
    v_add3_u32 v{T0+3}, v{T0+3}, v{T0+2}, 36
    v_cmp_gt_u32 vcc, 16, v{T0}
    v_and_b32 v{T0+4}, 3, v{T0}
    v_cmp_eq_u32 s[50:51], 0, v{T0+4}
    v_cndmask_b32 v{T0+3}, v{T0+3}, v{T0}, vcc
    v_add_u32 v{T0+3}, 80, v{T0+3}
    v_mul_u32_u24 v{T0+4}, {TI//16}, v{T0+1}
    v_add_u32 v{T0+3}, v{T0+3}, v{T0+4}
    s_mul_i32 s{sT}, s{sWV}, {CH}
    v_lshl_add_u32 v{T0+3}, v{T0+3}, 4, s{sT}
    v_mov_b32 v{T0+4}, {ONE}
    v_mov_b32 v{T0+5}, 0x3f80
    v_cndmask_b32 v{T0+7}, 0, v{T0+4}, s[50:51]
    v_cndmask_b32 v{T0+6}, v{T0+7}, v{T0+4}, vcc
    v_cndmask_b32 v{T0+7}, v{T0+7}, v{T0+5}, vcc
    v_mov_b32 v{T0+8}, v{T0+6}
    v_mov_b32 v{T0+9}, v{T0+7}
    ds_write_b128 v{T0+3}, {v(T0+6,4)}
    ds_write_b128 v{T0+3}, {v(T0+6,4)} offset:{2*TI}
    s_mov_b32 s{sSEC}, 0
    v_and_b32 v{T0+2}, 7, v{T0}
    v_lshlrev_b32 v{T0+2}, 1, v{T0+2}
    v_and_b32 v{T0+3}, 16, v{T0}
    v_bfe_u32 v{T0+4}, v{T0}, 3, 1
    v_add3_u32 v{T0+2}, v{T0+2}, v{T0+3}, v{T0+4}
    v_lshlrev_b32 v{T0+2}, 3, v{T0+2}
    v_lshl_add_u32 v{vK}, v{T0+1}, 8, v{T0+2}
    v_min_u32 v{T0+4}, 21, v{T0}
    v_mul_u32_u24 v{T0+3}, 384, v{T0+1}
    v_lshl_add_u32 v{T0+3}, v{T0+4}, 4, v{T0+3}
    v_add_u32 v{vV}, 1536, v{T0+3}
    v_lshlrev_b32 v{T0+10}, 3, v{LANE}               ; h*256 + n*8
    v_lshlrev_b32 v{T0+2}, 3, v{T0}
    v_lshl_add_u32 v{T0+11}, v{T0+1}, 30, v{T0+2}
    s_lshr_b32 s{sT}, s{sHEAD}, 3
    s_lshl_b32 s{sT}, s{sT}, 6
    s_add_u32 s{sT}, s{sT}, {WS_F1-WS_ST}
    v_lshl_add_u32 v{T0+12}, v{LANE}, 2, s{sT}
    s_lshl_b32 s{sT}, s{sCG}, 4
    s_add_u32 s{sT}, s{sT}, s{sMB}
    s_lshl_b32 s{sT}, s{sT}, 2
    s_add_u32 s{sT}, s{sT}, {WS_F1-WS_ST}
    v_mov_b32 v{T0+13}, s{sT}
    v_mov_b32 v{T0+14}, 1
    ''')
    for i in range(32): a(f'v_mov_b32 v{Or(0)+i}, 0')
    for i in range(4): a(f'v_mov_b32 v{V1+i}, 0')
    a(f'''
    v_mov_b32 v{Pr(1)+4}, 0
    v_mov_b32 v{Pr(1)+5}, 0
    s_mov_b32 s51, 0xffff
    s_mov_b32 s{sC}, 0
    s_mov_b32 s{sTG}, {2*CH}
    s_lshl_b32 s{sT}, s{sHEAD}, 6
    s_add_u32 s{sT}, s{sT}, s{sTQ}
    s_mul_i32 s{sT2}, s{sT}, 1280
    s_waitcnt vmcnt(0) lgkmcnt(0)
    ''')
    stamp(a, 5)
    a(f'''
    s_barrier
    s_cmp_lg_u32 s{sWV}, 0
    s_cbranch_scc1 L_a_noflag
    s_mov_b64 exec, 1
    buffer_store_dword v{T0+14}, v{T0+13}, {s(RF,4)}, 0 offen sc1
    s_mov_b64 exec, -1
    L_a_noflag:
    ''')
    if STOP == 1: a('s_branch L_fin')
    a('s_barrier')
    stamp(a, 6)
    for q in range(2):
        a(f'''
        buffer_load_dwordx2 {v(Q1(q),2)}, v{T0+10}, {s(RQ,4)}, s{sT2} offen offset:{1280*q}
        buffer_load_dwordx2 {v(Q1(q)+2,2)}, v{T0+10}, {s(RQ,4)}, s{sT2} offen offset:{1280*q+512}
        buffer_load_dwordx2 {v(Q2(q),2)}, v{T0+11}, {s(RQ,4)}, s{sT2} offen offset:{1280*q+1024}
        ''')
    def rK(t, km=KM): return f'ds_read2st64_b64 {v(km,4)}, v{vK} offset0:{6*t} offset1:{6*t+1}'
    def rP(t): return f'ds_read2st64_b64 {v(KP(t),4)}, v{vK} offset0:{6*t+2} offset1:{6*t+8}'
    def rV(t, aa): return f'ds_read_b128 {v(V1 if aa else V0,4)}, v{vV} offset:{t*TI+aa*768}'
    def qk1(q, par, km=KM): return f'v_mfma_f32_32x32x16_bf16 {v(Sr(q,par),16)}, {v(km,4)}, {v(Q1(q),4)}, 0'
    def qk2(q, par, t): return f'v_mfma_f32_32x32x8_bf16 {v(Sr(q,par),16)}, {v(KP(t),2)}, {v(Q2(q),2)}, {v(Sr(q,par),16)}'
    def pv(q, aa): return f'v_mfma_f32_32x32x16_bf16 {v(Or(q),16)}, {v(V1 if aa else V0,4)}, {v(Pr(q)+4*aa,4)}, {v(Or(q),16)}'
    M0, M1_ = T0+8, T0+9
    NM = T0+6
    def maxtree(q, par, first):
        sr = Sr(q,par); m = M0+q
        L = []
        if first: L.append(f'v_max3_f32 v{m}, v{sr}, v{sr+1}, v{sr+2}'); L.append(f'v_max_f32 v{m}, v{m}, v{sr+3}'); st = 4
        else: st = 0
        for i in range(st, 16, 2): L.append(f'v_max3_f32 v{m}, v{m}, v{sr+i}, v{sr+i+1}')
        return L
    def set_m():
        a(f'''
        v_mov_b32 v{T0}, v{M0}
        v_mov_b32 v{T0+1}, v{M1_}
        s_mov_b32 s50, {f2u(-DOFF)}
        v_cmp_lt_u32 vcc, 31, v{LANE}
        v_permlane32_swap_b32 v{T0}, v{M0}
        v_permlane32_swap_b32 v{T0+1}, v{M1_}
        s_nop 0
        v_max_f32 v{M0}, v{M0}, v{T0}
        v_max_f32 v{M1_}, v{M1_}, v{T0+1}
        v_sub_f32 v{NM}, s50, v{M0}
        v_sub_f32 v{NM+1}, s50, v{M1_}
        ''')
        for q in range(2):
            m = M0+q; t = T0+3*q
            a(f'''
            v_cvt_pk_bf16_f32 v{t}, v{NM+q}, v{NM+q}
            v_and_b32 v{t+1}, 0xffff0000, v{t}
            v_sub_f32 v{m}, v{NM+q}, v{t+1}
            v_cvt_pk_bf16_f32 v{t+1}, v{m}, v{m}
            v_and_b32 v{t+2}, 0xffff0000, v{t+1}
            v_sub_f32 v{m}, v{m}, v{t+2}
            v_cvt_pk_bf16_f32 v{m}, v{m}, 0
            v_and_or_b32 v{t}, v{t}, s51, v{t+2}
            v_cndmask_b32 v{Q2(q)}, v{Q2(q)}, v{t}, vcc
            v_cndmask_b32 v{Q2(q)+1}, v{Q2(q)+1}, v{m}, vcc
            ''')
    a('s_barrier')
    stamp(a, 7)
    KM2 = T0+12
    a(rK(0,KM2)); a(rP(0)); a(rK(1)); a(rV(0,0))
    a('s_waitcnt vmcnt(0) lgkmcnt(2)')
    a(qk1(0,0,KM2)); a(qk1(1,0,KM2)); a(qk2(0,0,0)); a(qk2(1,0,0))
    a('s_waitcnt lgkmcnt(1)')
    a(qk1(0,1)); a(qk1(1,1)); a(qk2(0,1,1)); a(qk2(1,1,1))
    a('s_nop 6')
    for x in maxtree(0,0,True) + maxtree(1,0,True): a(x)
    for x in maxtree(0,1,False) + maxtree(1,1,False): a(x)
    for i in range(4): a(f'v_mov_b32 v{Sr(1,1)+12+i}, 0')
    set_m()
    for q in range(2):
        for i in range(16): a(f'v_add_f32 v{Sr(q,0)+i}, v{NM+q}, v{Sr(q,0)+i}')
    stamp(a, 8)
    a('.p2align 6\nL_aloop:')
    for jj in range(8):
        par = jj & 1; nx = 1-par
        e = lambda q, i: f'v_exp_f32 v{Sr(q,par)+i}, v{Sr(q,par)+i}'
        c = lambda q, p_, i: f'v_cvt_pk_bf16_f32 v{Pr(q)+i}, v{Sr(q,p_)+2*i}, v{Sr(q,p_)+2*i+1}'
        ev = (jj % 2 == 0)
        ms = [(qk1(0,nx), []),
              (pv(1,1), [rV(jj, 1)]),
              (qk2(0,nx,jj+1), ['s_waitcnt lgkmcnt(1)']),
              (pv(0,0), [rP((jj+2) % 8)] if ev else []),
              (qk1(1,nx), [f's_waitcnt lgkmcnt({1 if ev else 0})', rK((jj+2) % 8)]),
              (pv(0,1), ['s_barrier'] if jj in (1,5) else []),
              (qk2(1,nx,jj+1), []),
              (pv(1,0), ['s_waitcnt lgkmcnt(0)', rV((jj+1) % 8, 0)])]
        if jj == 6: ms[0][1].append(f'v_add_u32 v{vK}, s{sTG}, v{vK}')
        if jj == 7:
            ms[3][1].append(f'v_add_u32 v{vV}, s{sTG}, v{vV}')
            ms[0][1].append(f's_add_u32 s{sC}, s{sC}, 1')
            ms[5][1].append(f's_sub_u32 s{sTG}, 0, s{sTG}')
            ms[6][1].append(f's_cmp_lt_u32 s{sC}, 8')
        for g in range(8):
            q = g >> 2; b = 4*(g & 3)
            m, xs = ms[g]
            for i in range(4): a(e(q,b+i))
            a(m)
            for x in xs: a(x)
            if g == 0: a(c(1,nx,6)); a(c(1,nx,7))
            elif g == 4: a(c(0,par,6)); a(c(0,par,7))
            else: a(c(q,par,2*(g&3)-2)); a(c(q,par,2*(g&3)-1))
    a('s_cbranch_scc1 L_aloop')
    stamp(a, 9)
    a(f'v_cvt_pk_bf16_f32 v{Pr(1)+6}, v{Sr(1,1)+12}, v{Sr(1,1)+13}\nv_cvt_pk_bf16_f32 v{Pr(1)+7}, v{Sr(1,1)+14}, v{Sr(1,1)+15}')
    a(f'v_mov_b32 v{T0+2}, 0\nv_mov_b32 v{T0+3}, 0')
    a(pv(1,1))
    a(f'''
    L_merge:
    s_mov_b32 s50, {f2u(2.0**-8)}
    s_mov_b32 s53, {f2u(2.0**118)}
    s_lshl_b32 s{sT}, s{sTQ}, 5
    s_add_u32 s{sT}, s{sT}, s{sHEAD}
    s_mul_i32 s{sT}, s{sT}, 1280
    s_add_u32 s{sT2}, s{sT}, {32*1280}
    v_lshlrev_b32 v{T0+6}, 4, v{LANE}
    v_lshrrev_b32 v{T0+7}, 5, v{LANE}
    v_lshlrev_b32 v{T0+7}, 30, v{T0+7}
    v_lshl_add_u32 v{T0+7}, v{LANE}, 3, v{T0+7}
    v_mov_b32 v{T0}, v{Or(0)+8}
    v_mov_b32 v{T0+1}, v{Or(0)+8}
    ''')
    for i in range(12): a(f'v_fma_f32 v{T0+2}, abs(v{Or(0)+i}), s50, v{T0+2}')
    a(f'v_permlane32_swap_b32 v{T0}, v{T0+1}\nv_mov_b32 v{T0+4}, v{Or(1)+8}\nv_mov_b32 v{T0+5}, v{Or(1)+8}\nv_rcp_f32 v{T0+1}, v{T0+1}')
    for i in range(12): a(f'v_fma_f32 v{T0+3}, abs(v{Or(1)+i}), s50, v{T0+3}')
    a(f'''
    v_permlane32_swap_b32 v{T0+4}, v{T0+5}
    v_add_f32 v{T0+2}, v{T0+2}, v{T0+3}
    v_cmp_ngt_f32 vcc, s53, v{T0+2}
    v_rcp_f32 v{T0+5}, v{T0+5}
    ''')
    for i in range(12): a(f'v_mul_f32 v{Or(0)+i}, v{Or(0)+i}, v{T0+1}')
    a(f'''
    s_cmp_lg_u32 s{sSEC}, 0
    s_cbranch_scc1 L_safe
    s_cbranch_vccnz L_fallback
    L_safe:
    ''')
    for q in range(2):
        if q:
            for i in range(12): a(f'v_mul_f32 v{Or(q)+i}, v{Or(q)+i}, v{T0+5}')
        for i in range(6): a(f'v_cvt_pk_bf16_f32 v{Pr(q)+i}, v{Or(q)+2*i}, v{Or(q)+2*i+1}')
        a(f'''
        buffer_store_dwordx4 {v(Pr(q),4)}, v{T0+6}, {s(RO,4)}, s{sT2 if q else sT} offen {SC}
        buffer_store_dwordx2 {v(Pr(q)+4,2)}, v{T0+7}, {s(RO,4)}, s{sT2 if q else sT} offen offset:1024 {SC}
        ''')
    a(f'''
    s_and_b32 s{sT}, s{sJ}, 7
    s_lshl_b32 s{sT}, s{sT}, 5
    s_add_u32 s{sT}, s{sT}, s{sHEAD}
    s_lshl_b32 s{sT}, s{sT}, 2
    s_add_u32 s{sT}, s{sT}, {WS_F2-WS_ST}
    v_mov_b32 v{T0}, s{sT}
    v_mov_b32 v{T0+1}, 1
    s_waitcnt vmcnt(0)
    ''')
    stamp(a, 10)
    a(f'''
    s_barrier
    s_cmp_lg_u32 s{sWV}, 0
    s_cbranch_scc1 L_a_noflag2
    s_mov_b64 exec, 1
    buffer_store_dword v{T0+1}, v{T0}, {s(RF,4)}, 0 offen sc1
    s_mov_b64 exec, -1
    L_a_noflag2:
    s_setprio 0
    ''')
    if STOP == 2: a('s_branch L_fin')
    RX, ROUT = R0, R1
    srd(RX, pX, 0, S*D*2); srd(ROUT, pOUT, 0, S*D*2)
    XD, GO, LO = 100, 110, 115
    a(f'''
    s_lshr_b32 s{sT}, s{sXCD}, 1
    s_lshl_b32 s{sT}, s{sT}, 3
    s_lshr_b32 s{sT2}, s{sJ}, 2
    s_add_u32 s{sT}, s{sT}, s{sT2}
    s_mul_i32 s{sT}, s{sT}, {64*1280}
    s_and_b32 s{sT2}, s{sXCD}, 1
    s_lshl_b32 s{sT2}, s{sT2}, 2
    s_and_b32 s50, s{sJ}, 3
    s_add_u32 s{sT2}, s{sT2}, s50
    s_mul_i32 s{sT2}, s{sT2}, 160
    s_add_u32 s{sT}, s{sT}, s{sT2}
    ''')
    for r in range(5):
        a(f'''
        v_add_u32 v{T0}, {64*r}, v{LANE}
        v_mul_u32_u24 v{T0+1}, 3277, v{T0}
        v_lshrrev_b32 v{T0+1}, 16, v{T0+1}
        v_mul_u32_u24 v{T0+2}, 20, v{T0+1}
        v_sub_u32 v{T0}, v{T0}, v{T0+2}             ; c4
        v_lshl_add_u32 v{T0+1}, s{sWV}, 4, v{T0+1}  ; position 0..63
        v_mul_u32_u24 v{T0+2}, {RS}, v{T0+1}
        v_lshl_add_u32 v{T0+2}, v{T0}, 4, v{T0+2}
        v_add_u32 v{LO+2*r}, {L_B}, v{T0+2}
        v_add_u32 v{LO+2*r+1}, {L_B+2*BW}, v{T0+2}
        v_and_b32 v{T0+2}, 1, v{T0+1}
        v_lshlrev_b32 v{T0+2}, 4, v{T0+2}
        v_bfe_u32 v{T0+3}, v{T0+1}, 1, 4
        v_and_b32 v{T0+1}, 32, v{T0+1}
        v_add3_u32 v{T0+1}, v{T0+1}, v{T0+2}, v{T0+3}
        v_mul_u32_u24 v{T0+1}, 1280, v{T0+1}
        v_lshl_add_u32 v{GO+r}, v{T0}, 3, v{T0+1}
        buffer_load_dwordx2 {v(XD+2*r,2)}, v{GO+r}, {s(RX,4)}, s{sT} offen
        ''')
    a('s_waitcnt vmcnt(0)')
    XU = 80
    for r in range(5):
        for j in range(2):
            a(f'v_lshlrev_b32 v{XU+4*r+2*j}, 16, v{XD+2*r+j}\nv_and_b32 v{XU+4*r+2*j+1}, 0xffff0000, v{XD+2*r+j}')
    a('s_barrier\ns_barrier')
    stamp(a, 11)
    for r in range(5):
        R = 16*r
        a(f'''
        ds_read_b128 {v(R,4)}, v{LO+2*r}
        ds_read_b128 {v(R+4,4)}, v{LO+2*r} offset:{BW}
        ds_read_b128 {v(R+8,4)}, v{LO+2*r+1}
        ds_read_b128 {v(R+12,4)}, v{LO+2*r+1} offset:{BW}
        ''')
        if r >= 2:
            pass
    for r in range(5):
        R = 16*r
        a(f's_waitcnt lgkmcnt({min(15, 16-4*r)})' if r else 's_waitcnt lgkmcnt(15)')
        if r == 0: a('s_waitcnt lgkmcnt(12)')
        for i in range(4): a(f'v_add_f32 v{R+i}, v{R+i}, v{R+4+i}')
        for i in range(4): a(f'v_add_f32 v{R+8+i}, v{R+8+i}, v{R+12+i}')
        for i in range(4): a(f'v_add_f32 v{R+i}, v{R+i}, v{XU+4*r+i}')
        for i in range(4): a(f'v_add_f32 v{R+i}, v{R+i}, v{R+8+i}')
        a(f'v_cvt_pk_bf16_f32 v{R+4}, v{R}, v{R+1}\nv_cvt_pk_bf16_f32 v{R+5}, v{R+2}, v{R+3}')
        a(f'buffer_store_dwordx2 {v(R+4,2)}, v{GO+r}, {s(ROUT,4)}, s{sT} offen')
    a('s_branch L_fin')
    gV = T0+12
    a(f'''
    L_fallback:
    s_waitcnt lgkmcnt(0)
    s_mov_b32 s{sSEC}, 1
    v_and_b32 v{T0}, 31, v{LANE}
    v_lshrrev_b32 v{T0+1}, 5, v{LANE}
    v_lshlrev_b32 v{T0+1}, 6, v{T0+1}
    v_lshrrev_b32 v{T0+2}, 2, v{T0}
    v_lshl_add_u32 v{T0+1}, v{T0+2}, 8, v{T0+1}
    v_and_b32 v{T0+2}, 3, v{T0}
    v_lshl_add_u32 v{gV}, v{T0+2}, 4, v{T0+1}
    v_cmp_eq_u32 s[54:55], 20, v{T0}
    v_cmp_lt_u32 vcc, 31, v{LANE}
    v_mov_b32 v{M0}, 0xff800000
    v_mov_b32 v{M1_}, 0xff800000
    v_mov_b32 v{KP(0)}, {ONE}
    v_mov_b32 v{KP(0)+1}, 0x3f80
    ''')
    for i in range(8): a(f'v_cndmask_b32 v{V0+i}, 0, v{KP(0)}, s[54:55]')
    for q in range(2):
        for i in range(2): a(f'v_cndmask_b32_e64 v{Q2(q)+i}, v{Q2(q)+i}, 0, vcc')
    def ldK():
        a(f'''
        buffer_load_dwordx2 {v(KM,2)}, v{vK}, {s(RKV,4)}, s{sT} offen
        buffer_load_dwordx2 {v(KM+2,2)}, v{vK}, {s(RKV,4)}, s{sT} offen offset:512
        s_mov_b32 exec_hi, 0
        buffer_load_dwordx2 {v(KP(0),2)}, v{vK}, {s(RKV,4)}, s{sT} offen offset:1024
        s_mov_b32 exec_hi, -1
        ''')
    a(f's_mov_b32 s{sT}, s{sHB}\ns_mov_b32 s{sC}, 0\nL_fb1:')
    ldK()
    a('s_waitcnt vmcnt(0)')
    a(qk1(0,0)); a(qk1(1,0)); a(qk2(0,0,0)); a(qk2(1,0,0))
    a('s_nop 15')
    for x in maxtree(0,0,False) + maxtree(1,0,False): a(x)
    a(f'''
    s_add_u32 s{sT}, s{sT}, {KVREC}
    s_add_u32 s{sC}, s{sC}, 1
    s_cmp_lt_u32 s{sC}, 64
    s_cbranch_scc1 L_fb1
    ''')
    set_m()
    for i in range(32): a(f'v_mov_b32 v{Or(0)+i}, 0')
    a(f's_mov_b32 s{sT}, s{sHB}\ns_mov_b32 s{sC}, 0\nL_fb2:')
    ldK()
    a(f'''
    s_mov_b32 exec_lo, 0xfffff
    s_mov_b32 exec_hi, 0xfffff
    buffer_load_dwordx4 {v(V0,4)}, v{gV}, {s(RKV,4)}, s{sT} offen offset:1280
    buffer_load_dwordx4 {v(V1,4)}, v{gV}, {s(RKV,4)}, s{sT} offen offset:1408
    s_mov_b64 exec, -1
    s_waitcnt vmcnt(0)
    ''')
    a(qk1(0,0)); a(qk1(1,0)); a(qk2(0,0,0)); a(qk2(1,0,0))
    a('s_nop 15')
    for q in range(2):
        for i in range(16): a(f'v_exp_f32 v{Sr(q,0)+i}, v{Sr(q,0)+i}')
    for q in range(2):
        for i in range(8): a(f'v_cvt_pk_bf16_f32 v{Pr(q)+i}, v{Sr(q,0)+2*i}, v{Sr(q,0)+2*i+1}')
    a('s_nop 1')
    a(pv(0,0)); a(pv(1,0)); a(pv(0,1)); a(pv(1,1))
    a(f'''
    s_add_u32 s{sT}, s{sT}, {KVREC}
    s_add_u32 s{sC}, s{sC}, 1
    s_cmp_lt_u32 s{sC}, 64
    s_cbranch_scc1 L_fb2
    v_mov_b32 v{T0+2}, 0
    v_mov_b32 v{T0+3}, 0
    s_nop 7
    s_branch L_merge
    L_fin:
    ''')
    stamp(a, 12)
    if STAMPS: a('s_waitcnt vmcnt(0)')
    stamp(a, 13); stamp(a, 15, True)
    stamp_dump(a, sWV, 16, 42, 0, 250)
    a('L_end:\ns_endpgm')
    return a.text(), kernel_desc(name, 256).replace('denorm_mode_32 3', 'denorm_mode_32 0')

if __name__ == '__main__':
    import sys
    KN = 'parallel_sum__mha_block__dense_activation_relu__prompt_kernel'
    HDR = open('parallel_sum__mha_block__dense_activation_relu__prompt.s.ref').read().split('; Override')[0]
    t, d = gen_kf(KN)
    open(sys.argv[1], 'w').write(HDR + f'; @launch grid=(256,1,1) block=({KF_THREADS},1,1) lds={KF_LDS}\n.amdgcn_target "amdgcn-amd-amdhsa--gfx950"\n' + t + d)
```

```python
class Asm:
    def __init__(self):
        self.lines = []
        self._lab = 0
    def __call__(self, s=''):
        for l in s.split('\n'):
            l = l.strip()
            if not l: continue
            if l.endswith(':') or l.startswith('.') or l.startswith(';'):
                self.lines.append(l)
            else:
                self.lines.append('    ' + l)
    def label(self, base):
        self._lab += 1
        return f'L_{base}_{self._lab}'
    def text(self):
        return '\n'.join(self.lines) + '\n'

def v(a, n=1):
    return f'v{a}' if n == 1 else f'v[{a}:{a+n-1}]'
def s(a, n=1):
    return f's{a}' if n == 1 else f's[{a}:{a+n-1}]'

def kernel_header(name):
    return f""".text
.globl {name}
.p2align 8
.type {name},@function
{name}:
"""
def kernel_desc(name, vgpr, sgpr=102, accum=None):
    accum = accum if accum is not None else (vgpr + 3)//4*4
    return f""".section .rodata,"a"
.p2align 6
.amdhsa_kernel {name}
  .amdhsa_next_free_vgpr {vgpr}
  .amdhsa_next_free_sgpr {sgpr}
  .amdhsa_accum_offset {accum}
  .amdhsa_group_segment_fixed_size 0
  .amdhsa_kernarg_size 72
  .amdhsa_user_sgpr_count 2
  .amdhsa_user_sgpr_kernarg_segment_ptr 1
  .amdhsa_system_sgpr_workgroup_id_x 1
  .amdhsa_float_denorm_mode_32 3
.end_amdhsa_kernel
"""
def interleave(main, fill, start=0, every=1):
    out = []; fi = 0
    for i, m in enumerate(main):
        out.append(m)
        if i >= start and (i - start) % every == 0 and fi < len(fill):
            out.append(fill[fi]); fi += 1
    out += fill[fi:]
    return out

S, D, H, DH, FF = 2048, 640, 32, 20, 1728
KVREC = 2560
WS_Q  = 0
_E = lambda k, d: int(__import__('os').environ.get(k, d))
HSQ = 64*1280 + _E('PADQ', 0); HSK = 64*KVREC + _E('PADK', 0); RECH = 432*256 + _E('PADH', 0); RECO = 32*1280 + _E('PADO', 0)
WS_Q_SZ = H*HSQ
WS_KV = WS_Q + WS_Q_SZ
WS_KV_SZ = H*HSK
WS_H  = WS_KV + WS_KV_SZ
WS_H_SZ = 64*RECH
WS_O  = WS_H + WS_H_SZ
WS_O_SZ = 64*RECO
WS_Y  = WS_O + WS_O_SZ
WS_Y_SZ = S*D*2
WS_ST = WS_Y + WS_Y_SZ
WS_ST_SZ = S*8
WS_CP = WS_ST + WS_ST_SZ
WS_CP_SZ = 3*3712*4
WS_F1 = WS_CP + WS_CP_SZ
FSH = int(__import__('os').environ.get('KF_FSH', 7))
WS_F2 = WS_F1 + (256 << FSH)
WS_END = WS_F2 + (256 << FSH)

WS_STAMP = 24<<20
import os
STAMPS = os.environ.get('STAMPS') == '1'
def stamp(a, i, real=False):
    if not STAMPS: return
    a(f's_{"memrealtime" if real or os.environ.get("RT") else "memtime"} s[{64+2*i}:{65+2*i}]')
def stamp_dump(a, wave_sgpr, n, ws_lo, kidx=0, vt=0):
    if not STAMPS: return
    a(f"""
    s_waitcnt lgkmcnt(0)
    s_add_u32 s96, s{ws_lo}, {WS_STAMP + kidx*(1<<20)}
    s_addc_u32 s97, s{ws_lo+1}, 0
    s_mov_b32 s98, 0x100000
    s_mov_b32 s99, 0x20000
    s_lshl_b32 s100, s2, 4
    s_add_u32 s100, s100, s{wave_sgpr}
    s_lshl_b32 s100, s100, 6
    s_mov_b64 exec, 1
    v_mov_b32 v{vt}, 0
    """)
    for i in range(n):
        a(f'v_mov_b32 v{vt+1}, s{64+2*i}\nbuffer_store_dword v{vt+1}, v{vt}, s[96:99], s100 offen offset:{4*i}')

def stamp_loop(a, base, cnt_sgpr, n):
    if not STAMPS: return
    a('s_waitcnt lgkmcnt(0)')
    for i in range(n-1):
        a(f's_mov_b32 s{64+2*(base+i)}, s{64+2*(base+i+1)}')
    a(f's_memtime s[{64+2*(base+n-1)}:{65+2*(base+n-1)}]')
```

```python
from asmlib import *
import math, struct, os
def f2u(x): return struct.unpack('<I', struct.pack('<f', x))[0]
E = lambda k, d: int(os.environ.get(k, d))
STOP = E('KF_STOP', 0)
HST = E('KF_HST', 0)
CMODE = E('KF_CM', 0)
NOX = E('KF_NOX', 0)
CPOS = E('KF_CPOS', 5)
CPF = E('KF_CPF', 1)


KF_THREADS = 512
XSZ = 256*128; WSZ = 64*256; SLOT = XSZ + WSZ
TI = 3072; CH = 4*TI; L_B = 4*CH; BSL = 9216; BW = 3*BSL; RS = 336
L_ST = L_B + 4*BW
L_STI, L_STA, L_STB, L_CF = 0, 0, 1024, 2048
L_CNT = L_ST + 2560
KF_LDS = L_CNT + 64
QSCALE = math.log2(math.e)/math.sqrt(20.0)
DOFF = 88.0
ONE = 0x3f803f80
SPIN = 1 << 15
SC = 'sc1'
CPS = 3712*4

def gen_kg(name):
    a = Asm()
    a(kernel_header(name))
    pX, pWQ, pWO, pWS, pW1, pW2, pOUT, pDBG = 4, 6, 40, 42, 56, 58, 60, 62
    R0, R1, R2, R3, R4, R5 = 8, 12, 16, 20, 24, 28
    sWV, sMB, sCG, sTY, sXCD, sJ = 32, 33, 34, 35, 36, 37
    sT, sT2 = 38, 39
    LANE = 255
    def srd(r, ptr, off, size):
        if off: a(f's_add_u32 s{r}, s{ptr}, {off}\ns_addc_u32 s{r+1}, s{ptr+1}, 0')
        else: a(f's_mov_b32 s{r}, s{ptr}\ns_mov_b32 s{r+1}, s{ptr+1}')
        a(f's_mov_b32 s{r+2}, {size}\ns_mov_b32 s{r+3}, 0x20000')
    def poll(tag, vaddr, vdat, R, want, mask, soff='0', nap=None, pre=''):
        L = a.label('poll_'+tag); Ld = a.label('polled_'+tag)
        a(f'''
        {f's_mov_b64 exec, {mask}' if isinstance(mask, str) else f's_mov_b32 exec_lo, {mask & 0xffffffff}'}
        {'' if isinstance(mask, str) else f's_mov_b32 exec_hi, {mask >> 32}'}
        s_mov_b32 s53, 0
        {L}:
        {pre}
        buffer_load_dword v{vdat}, v{vaddr}, {s(R,4)}, {soff} offen sc1
        s_add_u32 s53, s53, 1
        s_waitcnt vmcnt(0)
        v_cmp_gt_u32 vcc, {want}, v{vdat}
        s_cmp_gt_u32 s53, {SPIN}
        s_cbranch_scc1 {Ld}
        s_cbranch_vccz {Ld}
        s_sleep {nap or E('KF_SLEEP', 4)}
        s_branch {L}
        {Ld}:
        s_mov_b64 exec, -1
        ''')
    stamp(a, 0); stamp(a, 14, True)
    sSTR, sXO, sWO = 45, 46, 47
    a(f"""
    s_load_dwordx4 s[4:7], s[0:1], 0
    s_load_dwordx4 s[56:59], s[0:1], 32
    s_load_dwordx2 s[42:43], s[0:1], 64
    s_load_dwordx4 s[60:63], s[0:1], 48
    s_load_dwordx2 s[40:41], s[0:1], 16
    s_cmp_ge_u32 s2, 256
    s_cbranch_scc1 L_end
    s_getpc_b64 s[48:49]
    L_pc:
    v_lshrrev_b32 v1, 6, v0
    v_and_b32 v{LANE}, 63, v0
    s_sub_u32 s48, s48, L_pc-{name}
    s_subb_u32 s49, s49, 0
    v_readfirstlane_b32 s{sWV}, v1
    v_lshlrev_b32 v2, 7, v0
    v_min_u32 v2, L_end-{name}, v2
    global_load_dword v254, v2, s[48:49]
    s_and_b32 s{sXCD}, s2, 7
    s_lshr_b32 s{sJ}, s2, 3
    s_cmp_lt_u32 s{sJ}, 3
    s_cbranch_scc1 L_stats
    s_cmp_lt_u32 s{sJ}, 18
    s_cselect_b32 s44, 3, 18
    s_cselect_b32 s48, 15, 14
    s_cselect_b32 s49, 0, 15
    s_movk_i32 s{sSTR}, 3456
    s_cselect_b32 s{sSTR}, 3840, s{sSTR}
    s_and_b32 s50, s2, 3
    s_mul_i32 s48, s48, s50
    s_sub_u32 s44, s{sJ}, s44
    s_add_u32 s44, s44, s48
    s_lshr_b32 s{sCG}, s44, 2
    s_and_b32 s{sMB}, s44, 3
    s_and_b32 s48, s2, 4
    s_add_u32 s{sMB}, s{sMB}, s48
    s_lshl_b32 s{sWO}, s{sCG}, 8
    s_add_u32 s{sCG}, s{sCG}, s49
    v_lshrrev_b32 v2, 3, v{LANE}
    v_and_b32 v3, 7, v{LANE}
    v_lshrrev_b32 v4, 1, v2
    v_xor_b32 v4, v4, v3
    s_lshl_b32 s48, s{sMB}, 3
    s_add_u32 s48, s48, s{sWV}
    v_lshl_add_u32 v5, s48, 5, v2
    v_mul_u32_u24 v5, 1280, v5
    v_lshl_add_u32 v8, v4, 4, v5
    v_xor_b32 v4, 4, v4
    v_lshl_add_u32 v9, v4, 4, v5
    v_add_u32 v9, {10240-1024}, v9
    v_add_u32 v10, {2*(10240-1024)}, v8
    v_add_u32 v11, {2*(10240-1024)}, v9
    v_lshrrev_b32 v2, 4, v{LANE}            ; r
    v_and_b32 v3, 15, v{LANE}
    s_and_b32 s48, s{sWV}, 1
    s_lshl_b32 s48, s48, 3
    v_lshl_add_u32 v4, v2, 1, s48
    v_xor_b32 v6, v3, v4
    v_lshl_add_u32 v5, s{sWV}, 3, v2
    v_mul_u32_u24 v5, s{sSTR}, v5
    v_lshl_add_u32 v12, v6, 4, v5
    s_lshl_b32 s48, s{sSTR}, 2
    s_sub_u32 s48, s48, 1024
    v_add_u32 v13, s48, v12
    s_mov_b32 s{R0+2}, {S*D*2}
    s_mov_b32 s{R0+3}, 0x20000
    s_mul_i32 s{R1+2}, s{sSTR}, 640
    s_mov_b32 s{R1+3}, 0x20000
    s_lshl_b32 m0, s{sWV}, 12
    s_cmp_lt_u32 s{sJ}, 18
    s_waitcnt lgkmcnt(0)
    s_mov_b32 s{R0}, s{pX}
    s_mov_b32 s{R0+1}, s{pX+1}
    s_cselect_b32 s{R1}, s{pWQ}, s{pW1}
    s_cselect_b32 s{R1+1}, s{pWQ+1}, s{pW1+1}
    buffer_load_dwordx4 v8, {s(R0,4)}, 0 offen lds
    buffer_load_dwordx4 v9, {s(R0,4)}, 0 offen offset:1024 lds
    buffer_load_dwordx4 v10, {s(R0,4)}, 0 offen offset:2048 lds
    buffer_load_dwordx4 v11, {s(R0,4)}, 0 offen offset:3072 lds
    s_lshl_b32 s48, s{sWV}, 11
    s_add_u32 m0, s48, {XSZ}
    s_mul_i32 s{sTY}, s{sCG}, 52
    buffer_load_dwordx4 v12, {s(R1,4)}, s{sWO} offen lds
    buffer_load_dwordx4 v13, {s(R1,4)}, s{sWO} offen offset:1024 lds
    s_lshr_b32 s{sTY}, s{sTY}, 8
    s_min_u32 s{sTY}, s{sTY}, 3
    s_cmp_lt_u32 s{sWV}, 4
    s_cbranch_scc1 L_compute
    """)
    sHW, sWST, sLX, sLW = 44, 48, 49, 50
    vXo, vWo = 8, 16
    if HST == 2: stamp(a, 2)
    a(f"""
    s_setprio 1
    s_sub_u32 s{sHW}, s{sWV}, 4
    s_sub_u32 s{sT}, s{sHW}, 4
    s_mul_i32 s{sT}, s{sT}, {32*1280}
    v_add_u32 v11, s{sT}, v11
    v_add_u32 v10, s{sT}, v10
    v_add_u32 v9, s{sT}, v9
    v_add_u32 v8, s{sT}, v8
    v_lshlrev_b32 v4, 1, v2
    v_xor_b32 v4, v3, v4
    v_lshl_add_u32 v5, s{sHW}, 4, v2
    v_mul_u32_u24 v5, s{sSTR}, v5
    v_lshl_add_u32 v{vWo}, v4, 4, v5
    v_xor_b32 v4, 8, v4
    v_lshl_add_u32 v{vWo+2}, v4, 4, v5
    s_lshl_b32 s{sT}, s{sSTR}, 2
    s_sub_u32 s{sT}, s{sT}, 1024
    s_lshl_b32 s{sT2}, s{sT}, 1
    v_add_u32 v{vWo+1}, s{sT}, v{vWo}
    v_add_u32 v{vWo+2}, s{sT2}, v{vWo+2}
    v_add_u32 v{vWo+3}, s{sT}, v{vWo+2}
    s_lshl_b32 s{sWST}, s{sSTR}, 6
    s_movk_i32 s{sXO}, 128
    s_add_u32 s{sWO}, s{sWO}, s{sWST}
    s_lshl_b32 s{sLX}, s{sHW}, 13
    s_lshl_b32 s{sLW}, s{sHW}, 12
    s_add_u32 s{sLW}, s{sLW}, {XSZ}
    """)
    for i in range(4): a(f'v_add_u32 v{vXo+4+i}, {4*10240}, v{vXo+i}')
    adv = f's_add_u32 s{sXO}, s{sXO}, 128\ns_add_u32 s{sWO}, s{sWO}, s{sWST}'
    def dma(lx, lw, slot):
        xs = [f'buffer_load_dwordx4 v{vXo+i}, {s(R0,4)}, s{sXO} offen offset:{1024*(i&3)} lds' for i in range(8)]
        ws = [f'buffer_load_dwordx4 v{vWo+m}, {s(R1,4)}, s{sWO} offen offset:{1024*m} lds' for m in range(4)]
        m0 = lambda r, o: f's_add_u32 m0, s{r}, {o}\ns_nop 0\n'
        return [m0(lx, slot*SLOT)+xs[0]] + xs[1:4] + [m0(lw, slot*SLOT)+ws[0]] + ws[1:4] + [m0(lx, slot*SLOT+4096)+xs[4]] + xs[5:7] + [xs[7]+'\n'+adv]
    D1 = dma(sLX, sLW, 1)
    NP = E('KF_NP', 8)
    for x in D1[:NP]: a(x)
    if HST == 2: stamp(a, 5)
    sS1, sSL, sSN = 51, 52, 54
    a(f"""
    s_mov_b32 s{sS1}, 0
    s_mov_b32 s{sSL}, 0
    s_mov_b32 s{sSN}, {2*SLOT}
    s_cmp_eq_u32 s{sTY}, 2
    s_cselect_b32 s3, 2, 3
    v_lshlrev_b32 v97, s3, v{LANE}
    v_add_u32 v97, {L_ST}, v97
    s_cselect_b32 s3, {L_STB}, 4
    v_add_u32 v96, s3, v97
    v_lshlrev_b32 v98, 2, v{LANE}
    v_lshlrev_b32 v95, 3, v{LANE}
    v_add_u32 v92, {L_ST+L_CF}, v98
    v_and_b32 v94, 3, v{LANE}
    v_lshlrev_b32 v94, 6, v94
    """)
    srd(R3, pWS, WS_ST, WS_END-WS_ST); srd(R4, pDBG, 0, 256)
    a(f's_waitcnt vmcnt({NP})')
    stamp(a, 1)
    a('s_barrier\ns_setprio 0')
    if HST == 2: stamp(a, 6)
    for x in D1[NP:]: a(x)
    if HST == 2: stamp(a, 7)
    a(f"""
    L_hloop:
    s_add_u32 s3, s{sLX}, s{sSN}
    s_add_u32 s55, s{sLW}, s{sSN}
    """)
    for x in dma(3, 55, 0): a(x)
    a(f"""
    s_mov_b32 s{sSN}, s{sSL}
    s_add_u32 s{sSL}, s{sSL}, {SLOT}
    s_cmp_eq_u32 s{sSL}, {3*SLOT}
    s_cselect_b32 s{sSL}, 0, s{sSL}
    """)
    if HST == 2:
        a(f's_cmp_lg_u32 s{sS1}, 0\ns_cbranch_scc1 L_nost'); stamp(a, 8); a('s_waitcnt vmcnt(12)'); stamp(a, 9); a('L_nost:')
    a(f"""
    s_add_u32 s{sS1}, s{sS1}, 1
    s_cmp_eq_u32 s{sS1}, 8
    s_waitcnt vmcnt(12)
    s_cbranch_scc1 L_h8
    """)
    if HST == 1: stamp_loop(a, 2, 0, 7)
    a(f"""
    s_barrier
    s_branch L_hloop
    L_h8:
    """)
    if HST == 1: stamp(a, 9)
    def st_loads():
        a(f's_lshl_b32 s{sT}, s{sMB}, 11\ns_lshl_b32 s{sT2}, s{sCG}, 9\ns_add_u32 s{sT2}, s{sT2}, {WS_CP-WS_ST}')
        for n in range(4): a(f'buffer_load_dwordx2 {v(100+2*n,2)}, v95, {s(R3,4)}, s{sT} offen offset:{512*n} sc1')
        for p_ in range(3):
            for n in range(2): a(f'buffer_load_dword v{108+2*p_+n}, v98, {s(R3,4)}, s{sT2} offen offset:{256*n} sc1')
            if p_ < 2: a(f's_add_u32 s{sT2}, s{sT2}, {CPS}')
    def st_lds():
        a(f"""
        s_cmp_eq_u32 s{sTY}, 0
        s_cselect_b32 s3, {f2u(QSCALE)}, 1.0
        s_cmp_eq_u32 s{sTY}, 2
        s_cselect_b32 s{sT}, 256, 512
        v_mov_b32 v90, v97
        v_mov_b32 v91, v96
        s_waitcnt vmcnt(0)
        """.replace(f's_cselect_b32 s{sT}, 256, 512', f's_movk_i32 s{sT}, 512\ns_cselect_b32 s{sT}, 256, s{sT}'))
        for n in range(2): a(f'v_add_f32 v{108+n}, v{108+n}, v{110+n}')
        for n in range(4): a(f'v_mul_f32 v{100+2*n}, s3, v{100+2*n}')
        for n in range(2): a(f'v_add_f32 v{108+n}, v{108+n}, v{112+n}')
        for n in range(4):
            a(f'ds_write_b32 v90, v{100+2*n}\nds_write_b32 v91, v{101+2*n}')
            if n < 3: a(f'v_add_u32 v90, s{sT}, v90\nv_add_u32 v91, s{sT}, v91')
        a('ds_write2st64_b32 v92, v108, v109 offset0:0 offset1:1\ns_waitcnt lgkmcnt(0)')
    a(f"""
    s_barrier
    s_cmp_lg_u32 s{sHW}, 0
    s_cbranch_scc1 L_h_others
    buffer_load_dword v93, v94, {s(R4,4)}, 0 offen sc1
    s_waitcnt vmcnt(1)
    s_barrier
    s_waitcnt vmcnt(0)
    v_cmp_gt_u32 vcc, 6, v93
    s_setprio 2
    s_nop 3
    s_cbranch_vccnz L_h_late
    """)
    st_loads()
    a('s_barrier')
    st_lds()
    a('s_branch L_h_join\nL_h_late:\ns_barrier')
    poll('p0', 94, 93, R4, 6, 0xF)
    st_loads(); st_lds()
    a("""
    s_branch L_h_join
    L_h_others:
    s_waitcnt vmcnt(0)
    s_barrier
    s_barrier
    L_h_join:
    """)
    stamp(a, 11 if HST else 2)
    a('s_barrier\ns_setprio 0')
    if not HST: stamp(a, 3)
    a('L_b_phase2:')
    ACC, WF, HF = 0, 80, 120
    vW, vKVo, vH0, vH1, vWb, vHb, vWr, vHr0, vHr1 = 152, 157, 160, 161, 162, 163, 164, 165, 166
    TB = 168
    sV = sHW
    sTB, sC8, sW2O, sHO, sLB, sSD, sSR, sKVO, sKVS, sC = 45, 46, 47, 48, 49, 50, 51, 52, 54, 55
    sKVE, sLBE = 33, 34
    M1 = 0xFFFF | (0xFFFFF << 32) | (0xFF << 56)
    M2 = 0xFFF | (0xFFFFF << 16) | (0xFFFFF << 40)
    RKV, RW2, RH = R0, R1, R2
    a(f'''
    v_lshlrev_b32 v{vKVo}, 4, v{LANE}
    ''')
    for k in range(2):
        a(f'''
        v_add_u32 v{TB}, {64*k+16}, v{LANE}          ; w + 48
        v_mul_u32_u24 v{TB+1}, 2731, v{TB}
        v_lshrrev_b32 v{TB+1}, 16, v{TB+1}           ; g + 2
        v_mul_u32_u24 v{TB+2}, 24, v{TB+1}
        v_sub_u32 v{TB}, v{TB}, v{TB+2}              ; row
        v_lshrrev_b32 v{TB+2}, 2, v{TB}
        v_and_b32 v{TB}, 3, v{TB}
        v_lshlrev_b32 v{TB}, 4, v{TB}
        v_lshl_add_u32 v{TB}, v{TB+1}, 6, v{TB}
        v_lshl_add_u32 v{TB}, v{TB+2}, 8, v{TB}
        v_add_u32 v{vKVo+1+k}, {1280-128}, v{TB}
        ''')
    a(f'''
    v_cmp_gt_u32 vcc, 32, v{LANE}
    v_add_u32 v{TB+3}, 1024, v{vKVo}
    s_nop 0
    v_cndmask_b32 v{vKVo+1}, v{vKVo+1}, v{TB+3}, vcc
    s_lshr_b32 s{sT}, s{sJ}, 3
    s_lshl_b32 s{sT2}, s{sXCD}, 2
    s_add_u32 s{sT}, s{sT}, s{sT2}             ; head
    s_mul_i32 s3, s{sT}, 20
    s_mul_i32 s{sT}, s{sT}, {HSK}
    s_mul_i32 s{sKVO}, s{sV}, {KVREC}
    s_add_u32 s{sKVO}, s{sKVO}, s{sT}
    s_mul_i32 s{sKVS}, s{sV}, {TI}
    s_add_u32 s{sKVE}, s{sKVS}, {4*CH}
    s_lshr_b32 s{sTB}, s{sXCD}, 1
    s_lshl_b32 s{sTB}, s{sTB}, 3
    s_lshr_b32 s{sT}, s{sJ}, 2
    s_add_u32 s{sTB}, s{sTB}, s{sT}
    s_and_b32 s{sC8}, s{sXCD}, 1
    s_lshl_b32 s{sC8}, s{sC8}, 2
    s_and_b32 s{sT}, s{sJ}, 3
    s_add_u32 s{sC8}, s{sC8}, s{sT}
    s_mul_i32 s{sT2}, s{sV}, 14
    s_cmp_eq_u32 s{sV}, 3
    s_cselect_b32 s{sT2}, 41, s{sT2}
    s_mul_i32 s{sW2O}, s{sT2}, {32*1280}
    s_mul_i32 s{sT}, s{sC8}, 160
    s_add_u32 s{sW2O}, s{sW2O}, s{sT}
    s_mul_i32 s{sHO}, s{sTB}, {2*RECH}
    s_lshl_b32 s{sT}, s{sT2}, 11
    s_add_u32 s{sHO}, s{sHO}, s{sT}
    s_mul_i32 s{sLB}, s{sV}, {BW}
    s_add_u32 s{sLB}, s{sLB}, {L_B}
    s_mov_b32 s{sSD}, s{sLB}
    s_mov_b32 s{sSR}, 0
    s_add_u32 s{sLBE}, s{sLB}, {BW}
    v_lshlrev_b32 v{vH0}, 4, v{LANE}
    v_add_u32 v{vH1}, {RECH}, v{vH0}
    ''')
    srd(RKV, pWS, WS_KV, WS_KV_SZ); srd(RW2, pW2, 0, FF*D*2); srd(RH, pWS, WS_H, WS_H_SZ)
    for m in range(5):
        a(f'''
        v_add_u32 v{TB}, {64*m}, v{LANE}
        v_mul_u32_u24 v{TB+1}, 6554, v{TB}
        v_lshrrev_b32 v{TB+1}, 16, v{TB+1}
        v_mul_u32_u24 v{TB+2}, 10, v{TB+1}
        v_sub_u32 v{TB}, v{TB}, v{TB+2}
        v_mul_u32_u24 v{TB+1}, 1280, v{TB+1}
        v_lshl_add_u32 v{vW+m}, v{TB}, 4, v{TB+1}
        ''')
    a(f'''
    v_and_b32 v{TB}, 15, v{LANE}              ; tau
    v_lshrrev_b32 v{TB+1}, 4, v{LANE}         ; g
    v_lshrrev_b32 v{TB+2}, 2, v{LANE}         ; 4g + r
    v_mul_u32_u24 v{TB+2}, 160, v{TB+2}
    v_and_b32 v{TB+3}, 3, v{LANE}
    v_lshl_add_u32 v{TB+2}, v{TB+3}, 3, v{TB+2}
    v_add_u32 v{vWb}, s{sLB}, v{TB+2}
    v_lshlrev_b32 v{TB+2}, 8, v{TB+1}
    v_lshl_add_u32 v{TB+2}, v{TB}, 3, v{TB+2}
    v_add_u32 v{TB+2}, 5120, v{TB+2}
    v_add_u32 v{vHb}, s{sLB}, v{TB+2}
    v_bfe_u32 v{TB+4}, v{LANE}, 3, 1
    v_mul_u32_u24 v{TB+4}, 19, v{TB+4}
    v_add_u32 v{TB+4}, s3, v{TB+4}
    v_lshrrev_b32 v{TB+4}, 7, v{TB+4}
    v_mul_u32_u24 v{TB+5}, 5, v{TB+1}
    v_add_u32 v{TB+4}, v{TB+4}, v{TB+5}
    v_and_b32 v{TB+5}, 7, v{LANE}
    v_lshl_add_u32 v{TB+4}, v{TB+4}, 3, v{TB+5}
    v_lshlrev_b32 v{TB+4}, {FSH}, v{TB+4}
    v_add_u32 v{TB+4}, {WS_F1-WS_ST}, v{TB+4}
    s_lshr_b32 s{sT}, s{sTB}, 2
    s_lshl_b32 s{sT}, s{sT}, {FSH}
    s_add_u32 s{sT}, s{sT}, {WS_F1-WS_ST+(15*8 << FSH)}
    v_lshl_add_u32 v{TB+5}, v{LANE}, {3+FSH}, s{sT}
    ''')
    for i in range(80): a(f'v_mov_b32 v{ACC+i}, 0')
    def wparts(slot_off):
        return [f's_add_u32 m0, {slot_off}, {1024*m}\ns_nop 0\nbuffer_load_dwordx4 v{vW+m}, {s(RW2,4)}, s{sW2O} offen lds' for m in range(5)]
    def hparts(slot_off):
        L = []
        for i in range(4):
            pre = f's_add_u32 m0, {slot_off}, {5120+2048*(i>>1)}\ns_nop 0\n' if i % 2 == 0 else ''
            L.append(pre + f'buffer_load_dwordx4 v{vH1 if i>>1 else vH0}, {s(RH,4)}, s{sHO} offen offset:{1024*(i&1)} lds')
        L[-1] += f'\ns_add_u32 s{sHO}, s{sHO}, 2048'
        return L
    for k in range(3):
        a(f's_add_u32 s3, s{sLB}, {k*BSL}')
        for x in wparts('s3'): a(x)
        a(f's_add_u32 s{sW2O}, s{sW2O}, {32*1280}')
    def kvdma():
        a(f'''
        s_mov_b32 m0, s{sKVS}
        s_add_u32 s{sKVS}, s{sKVS}, {CH}
        buffer_load_dwordx4 v{vKVo}, {s(RKV,4)}, s{sKVO} offen lds
        s_add_u32 m0, m0, 1024
        s_mov_b32 exec_lo, {M1 & 0xffffffff}
        s_mov_b32 exec_hi, {M1 >> 32}
        buffer_load_dwordx4 v{vKVo+1}, {s(RKV,4)}, s{sKVO} offen lds
        s_add_u32 m0, m0, 1024
        s_mov_b32 exec_lo, {M2 & 0xffffffff}
        s_mov_b32 exec_hi, {M2 >> 32}
        buffer_load_dwordx4 v{vKVo+2}, {s(RKV,4)}, s{sKVO} offen lds
        s_mov_b64 exec, -1
        s_add_u32 s{sKVO}, s{sKVO}, {4*KVREC}
        s_cmp_eq_u32 s{sKVS}, s{sKVE}
        s_cselect_b32 s{sT}, {4*CH}, 0
        s_sub_u32 s{sKVS}, s{sKVS}, s{sT}
        ''')
    MQ = (1 << 48) - 1
    if not HST: stamp(a, 4)
    a('s_barrier')
    if STOP == 1: a('s_branch L_fin')
    a(f's_setprio 1\ns_cmp_lg_u32 s{sV}, 0\ns_cbranch_scc1 L_b_p2')
    poll('kv', TB+4, TB+6, R3, 1, MQ)
    a('L_b_p2:\ns_barrier')
    stamp(a, 5)
    kvdma(); kvdma()
    a('s_waitcnt vmcnt(3)\ns_setprio 0')
    stamp(a, 6)
    a('s_barrier')
    kvdma()
    a(f's_cmp_lg_u32 s{sV}, 0\ns_cbranch_scc1 L_b_ph')
    poll('h', TB+5, TB+6, R3, 1, 0x3FFF)
    a('L_b_ph:\ns_waitcnt vmcnt(3)\ns_barrier')
    for x in hparts(f's{sLB}'): a(x)
    kvdma()
    for k in (1, 2):
        a(f's_add_u32 s3, s{sLB}, {k*BSL}')
        for x in hparts('s3'): a(x)
    def dmas(last=False):
        L = wparts(f's{sSD}')
        if last: L[-1] += f'\ns_cmp_ge_u32 s{sV}, 2\ns_cselect_b32 s{sHO}, 0x40000000, s{sHO}'
        L += hparts(f's{sSD}')
        L[-1] += f'''
        s_add_u32 s{sW2O}, s{sW2O}, {32*1280}
        s_add_u32 s{sSD}, s{sSD}, {BSL}
        s_cmp_eq_u32 s{sSD}, s{sLBE}
        s_cselect_b32 s{sSD}, s{sLB}, s{sSD}'''
        return L
    def reads(buf):
        L = [f'ds_read2st64_b64 {v(HF+16*buf+4*i,4)}, v{vHr1 if i & 1 else vHr0} offset0:{4*(i>>1)} offset1:{4*(i>>1)+2}' for i in range(4)]
        for ct in range(5):
            for e_ in range(2):
                L.append(f'ds_read_b64_tr_b16 {v(WF+20*buf+4*ct+2*e_,2)}, v{vWr} offset:{e_*2560+ct*32}')
        L[0] = f'''v_add_u32 v{vHr0}, s{sSR}, v{vHb}
        v_add_u32 v{vWr}, s{sSR}, v{vWb}
        s_add_u32 s{sSR}, s{sSR}, {BSL}
        v_add_u32 v{vHr1}, 128, v{vHr0}
        s_cmp_eq_u32 s{sSR}, {BW}
        s_cselect_b32 s{sSR}, 0, s{sSR}
        ''' + L[0]
        return L
    def mfmas(buf):
        return [f'v_mfma_f32_16x16x32_bf16 {v(ACC+4*(5*tb+ct),4)}, {v(WF+20*buf+4*ct,4)}, {v(HF+16*buf+4*tb,4)}, {v(ACC+4*(5*tb+ct),4)}' for ct in range(5) for tb in range(4)]
    a('s_waitcnt vmcnt(11)')
    for x in reads(0): a(x)
    def interval(buf, kv, rd, Dm, w0, bar=True):
        a('s_waitcnt lgkmcnt(0)\ns_barrier' if bar else 's_waitcnt lgkmcnt(0)')
        if kv: kvdma()
        if rd: a(f's_waitcnt vmcnt({w0})')
        R = reads(1-buf) if rd else []
        oth = []
        while R or Dm:
            if R: oth.append(R.pop(0))
            if R: oth.append(R.pop(0))
            if Dm: oth.append(Dm.pop(0))
        M = mfmas(buf)
        for i, m in enumerate(M):
            a(m)
            if oth: a(oth.pop(0))
            if len(oth) > len(M)-1-i: a(oth.pop(0))
        for x in oth: a(x)
    interval(0, True, True, dmas(), 7)
    a(f's_mov_b32 s{sC}, 0\nL_bloop:')
    interval(1, True, True, dmas(), 12); interval(0, True, True, dmas(), 12)
    a(f's_add_u32 s{sC}, s{sC}, 1\ns_cmp_lt_u32 s{sC}, 4\ns_cbranch_scc1 L_bloop')
    interval(1, True, True, dmas(), 12)
    interval(0, True, True, dmas(True), 12)
    interval(1, True, True, [], 12)
    interval(0, False, True, [], 0)
    srd(RW2, pWO, 0, D*D*2)
    a(f'''
    s_mul_i32 s{sW2O}, s{sV}, {160*1280}
    s_mul_i32 s{sT}, s{sC8}, 160
    s_add_u32 s{sW2O}, s{sW2O}, s{sT}
    s_mov_b32 s{sSD}, s{sLB}
    ''')
    def wo_group():
        L = wparts(f's{sSD}')
        L[-1] += f'\ns_add_u32 s{sW2O}, s{sW2O}, {32*1280}\ns_add_u32 s{sSD}, s{sSD}, 5120'
        return L
    interval(1, False, False, wo_group()+wo_group()+wo_group(), 0)
    a('s_barrier')
    for x in wo_group()+wo_group(): a(x)
    OF = 120; vA, vP, vOm, vOp = 200, 201, 202, 203
    RO = R2
    srd(RO, pWS, WS_O, WS_O_SZ)
    a(f'''
    v_and_b32 v{TB}, 15, v{LANE}             ; tau
    v_lshrrev_b32 v{TB+1}, 4, v{LANE}        ; g
    v_lshrrev_b32 v{TB+2}, 1, v{TB+1}
    v_and_b32 v{TB+3}, 1, v{TB+1}
    v_mul_u32_u24 v{TB+4}, 1280, v{TB+2}
    v_lshl_add_u32 v{TB+4}, v{TB+3}, 9, v{TB+4}
    v_lshl_add_u32 v{vOm}, v{TB}, 4, v{TB+4}
    v_mul_u32_u24 v{TB+4}, 2560, v{TB+1}
    v_lshl_add_u32 v{vOp}, v{TB}, 3, v{TB+4}
    v_mul_u32_u24 v{TB+2}, 20, v{TB+2}
    v_lshl_add_u32 v{TB+2}, v{TB+3}, 2, v{TB+2}
    v_lshrrev_b32 v{TB+4}, 2, v{TB}              ; r
    v_add_u32 v{TB+2}, v{TB+2}, v{TB+4}
    v_mul_u32_u24 v{TB+2}, 160, v{TB+2}
    v_and_b32 v{TB+5}, 3, v{TB}
    v_lshl_add_u32 v{TB+5}, v{TB+5}, 3, s{sLB}
    v_add_u32 v{vA}, v{TB+2}, v{TB+5}
    v_mul_u32_u24 v{TB+2}, 40, v{TB+1}
    v_add3_u32 v{TB+2}, v{TB+2}, v{TB+4}, 16
    v_mul_u32_u24 v{TB+2}, 160, v{TB+2}
    v_add_u32 v{vP}, v{TB+2}, v{TB+5}
    v_mul_u32_u24 v{TB}, {RS}, v{TB}
    v_lshl_add_u32 v{TB}, v{TB+1}, 4, v{TB}
    v_add_u32 v{204}, s{sLB}, v{TB}
    s_lshr_b32 s{sT}, s{sTB}, 2
    s_lshl_b32 s{sT}, s{sT}, {5+FSH}
    s_add_u32 s{sT}, s{sT}, {WS_F2-WS_ST}
    v_lshl_add_u32 v{TB+6}, v{LANE}, {FSH}, s{sT}
    s_mul_i32 s{sHO}, s{sTB}, {2*RECO}
    s_mul_i32 s{sT}, s{sV}, {8*1280}
    s_add_u32 s{sHO}, s{sHO}, s{sT}
    s_setprio 1
    s_waitcnt vmcnt(0)
    ''')
    def wreads(u):
        L = []
        for ct in range(5):
            for e in range(2):
                if u < 4: L.append(f'ds_read_b64_tr_b16 {v(WF+20*(u&1)+4*ct+2*e,2)}, v{vA} offset:{(40*u+8*e)*160+32*ct}')
                else: L.append(f'ds_read_b64_tr_b16 {v(WF+20*(u&1)+4*ct+2*e,2)}, v{vP} offset:{20*e*160+32*ct}')
        return L
    for x in wreads(0): a(x)
    stamp(a, 7)
    if STOP == 2: a('s_branch L_fin')
    a(f's_cmp_lg_u32 s{sV}, 0\ns_cbranch_scc1 L_b_po')
    poll('o', TB+6, TB+7, R3, 1, 0xFFFFFFFF)
    a('L_b_po:\ns_barrier')
    stamp(a, 8)
    for u in range(4):
        for T_ in range(2):
            a(f's_add_u32 s3, s{sHO}, {u*2560+T_*RECO}')
            for b in range(2):
                a(f'buffer_load_dwordx4 {v(OF+16*u+8*T_+4*b,4)}, v{vOm}, {s(RO,4)}, s3 offen offset:{256*b}')
    for T_ in range(2):
        a(f's_add_u32 s3, s{sHO}, {1024+T_*RECO}')
        for b in range(2):
            for e in range(2):
                a(f'buffer_load_dwordx2 {v(OF+64+8*T_+4*b+2*e,2)}, v{vOp}, {s(RO,4)}, s3 offen offset:{128*b+1280*e}')
    for u in range(5):
        a(f's_waitcnt vmcnt({20-4*u if u < 4 else 0}) lgkmcnt(0)')
        if u == 0: stamp(a, 9)
        M = [f'v_mfma_f32_16x16x32_bf16 {v(ACC+4*(5*tb+ct),4)}, {v(WF+20*(u&1)+4*ct,4)}, {v(OF+16*u+4*tb,4)}, {v(ACC+4*(5*tb+ct),4)}' for tb in range(4) for ct in range(5)]
        for x in interleave(M, wreads(u+1) if u < 4 else [], 0, 1): a(x)
    stamp(a, 10)
    for tb in range(4):
        for ct in range(5):
            if tb == 3 and ct == 0: a('s_nop 0')
            a(f'ds_write_b128 v204, {v(ACC+4*(5*tb+ct),4)} offset:{tb*16*RS+ct*64}')
    a('s_waitcnt lgkmcnt(0)\ns_barrier\ns_branch L_fin')
    ACC = 0; XF = 128; WF = 192
    vA_ = list(range(224, 230)); vB_ = list(range(230, 236))
    VO, vSA, vCA = 236, 240, 241
    sTH, sCH, sHS, sREC, sT0, sSLOT, sS = 44, 45, 46, 54, 55, 51, 52
    HP = 168
    RO1 = R0
    a(f"""
    L_compute:
    s_and_b32 s{sTH}, s{sWV}, 1
    s_lshr_b32 s{sCH}, s{sWV}, 1
    v_and_b32 v2, 15, v{LANE}               ; tau / (4r+c)
    v_lshrrev_b32 v3, 4, v{LANE}            ; g
    s_lshl_b32 s{sT}, s{sTH}, 14
    v_lshrrev_b32 v4, 1, v2
    v_xor_b32 v4, v4, v3
    v_lshl_add_u32 v5, v2, 7, s{sT}
    v_lshl_add_u32 v{vB_[0]}, v4, 4, v5
    v_xor_b32 v4, 4, v4
    v_lshl_add_u32 v{vB_[1]}, v4, 4, v5
    v_lshrrev_b32 v4, 2, v2                 ; r
    v_lshl_add_u32 v5, v3, 3, v4            ; 8g + r
    v_lshlrev_b32 v5, 8, v5
    v_and_b32 v6, 1, v2
    v_lshl_add_u32 v5, v6, 3, v5
    v_and_b32 v6, 1, v3
    v_lshlrev_b32 v6, 3, v6
    v_lshl_add_u32 v6, v4, 1, v6            ; swizzle
    v_bfe_u32 v7, v2, 1, 1
    v_lshl_add_u32 v7, s{sCH}, 3, v7
    v_xor_b32 v6, v6, v7
    """)
    for ct in range(4):
        a(f'v_xor_b32 v7, {2*ct}, v6\nv_lshl_add_u32 v{vB_[2+ct]}, v7, 4, v5')
    for d_, s_ in zip(vA_, vB_): a(f'v_mov_b32 v{d_}, v{s_}')
    a(f"""
    s_lshl_b32 s{sT0}, s{sMB}, 3
    s_lshl_b32 s{sT}, s{sTH}, 2
    s_add_u32 s{sT0}, s{sT0}, s{sT}
    s_mul_i32 s{sT}, s{sTY}, 5
    s_sub_u32 s{sT}, s{sCG}, s{sT}
    s_lshl_b32 s{sT}, s{sT}, 1
    s_add_u32 s{sT}, s{sT}, s{sCH}
    s_lshl_b32 s50, s{sT}, 4
    s_cmp_eq_u32 s{sTY}, 3
    s_mov_b32 s{sHS}, {HSK}
    s_movk_i32 s{sREC}, {KVREC}
    s_mov_b32 s47, {WS_KV}
    s_mov_b32 s{RO1+2}, {WS_KV_SZ}
    s_cselect_b32 s{sHS}, 1280, s{sHS}
    s_cselect_b32 s{sREC}, {RECH}, s{sREC}
    s_cselect_b32 s47, {WS_H}, s47
    s_cselect_b32 s{RO1+2}, {WS_H_SZ}, s{RO1+2}
    s_cmp_eq_u32 s{sTY}, 0
    s_cselect_b32 s{sHS}, {HSQ}, s{sHS}
    s_cselect_b32 s{sREC}, 1280, s{sREC}
    s_cselect_b32 s47, {WS_Q}, s47
    s_cselect_b32 s{RO1+2}, {WS_Q_SZ}, s{RO1+2}
    s_cmp_ge_u32 s50, 432
    s_cselect_b32 s{RO1+2}, 0, s{RO1+2}
    s_add_u32 s{RO1}, s{pWS}, s47
    s_addc_u32 s{RO1+1}, s{pWS+1}, 0
    s_mul_i32 s{sT0}, s{sT0}, s{sREC}
    s_mov_b32 s{sSLOT}, 0
    s_mov_b32 s{sS}, 0
    s_lshl_b32 s{sT}, s{sCH}, 8
    s_add_u32 s{sT}, s{sT}, {L_ST+L_CF}
    s_cmp_eq_u32 s{sTY}, 2
    s_cselect_b64 vcc, -1, 0
    s_cselect_b32 s{sT2}, 9, 10
    s_lshl_b32 s{sT2}, s{sTH}, s{sT2}
    s_add_u32 s{sT2}, s{sT2}, {L_ST}
    v_lshlrev_b32 v4, 3, v2
    v_lshlrev_b32 v5, 4, v3
    v_lshlrev_b32 v6, 2, v2
    v_cndmask_b32 v4, v4, v5, vcc
    v_cndmask_b32 v6, v5, v6, vcc
    v_add_u32 v{vSA}, s{sT2}, v4
    v_add_u32 v{vCA}, s{sT}, v6
    v_lshrrev_b32 v4, 2, v2
    v_cndmask_b32 v8, v3, v4, vcc
    v_add_u32 v8, s50, v8
    v_and_b32 v4, 3, v2
    v_lshlrev_b32 v4, 4, v4
    v_lshl_add_u32 v4, v3, 6, v4
    v_add_u32 v4, 1280, v4
    v_lshlrev_b32 v5, 4, v2
    v_cndmask_b32 v7, v5, v4, vcc
    """)
    for ct in range(4):
        a(f"""
        v_add_u32 v4, {4*ct}, v8
        v_mul_u32_u24 v5, 205, v4
        v_lshrrev_b32 v5, 10, v5
        v_mul_u32_u24 v6, 5, v5
        v_sub_u32 v4, v4, v6
        v_mul_lo_u32 v5, v5, s{sHS}
        v_add_u32 v5, v5, v7
        v_lshl_add_u32 v{VO+ct}, v4, 8, v5
        """)
    for i in range(128): a(f'v_mov_b32 v{ACC+i}, 0')
    a('s_setprio 1\ns_waitcnt vmcnt(0)')
    def creads(ss, buf):
        xs = [f'ds_read_b128 {v(XF+32*buf+4*tt,4)}, v{vA_[ss]} offset:{tt*2048}' for tt in range(8)]
        ws = []
        for ct in range(4):
            for e in range(2):
                ws.append(f'ds_read_b64_tr_b16 {v(WF+16*buf+4*ct+2*e,2)}, v{vA_[2+ct]} offset:{XSZ+(32*ss+4*e)*256}')
        return ws[0:2] + xs + ws[2:]
    def cmfmas(buf, vori):
        m = []
        for ct in range(4):
            for tt in range(8):
                d = v(ACC+4*(tt*4+ct),4); w = v(WF+16*buf+4*ct,4); x = v(XF+32*buf+4*tt,4)
                m.append(f'v_mfma_f32_16x16x32_bf16 {d}, {x}, {w}, {d}' if vori else f'v_mfma_f32_16x16x32_bf16 {d}, {w}, {x}, {d}')
        return m
    stamp(a, 1)
    a('s_barrier')
    stamp(a, 2)
    for r in creads(0,0): a(r)
    a(f's_cmp_eq_u32 s{sTY}, 2\ns_waitcnt lgkmcnt(0)\ns_cbranch_scc1 L_loopV')
    for vori in (False, True):
        L = 'L_loopV' if vori else 'L_loopN'
        a(f'.p2align 5\n{L}:')
        cnt = 0
        for ins in interleave(cmfmas(0,vori), creads(1,1), 0, 1):
            a(ins)
            if ins.startswith('v_mfma'):
                cnt += 1
                if cnt == 18: a(f's_add_u32 s{sSLOT}, s{sSLOT}, {SLOT}')
                if cnt == 19: a(f's_cmp_eq_u32 s{sSLOT}, {3*SLOT}')
                if cnt == 20: a(f's_cselect_b32 s{sSLOT}, 0, s{sSLOT}')
                if cnt == 23: a('s_waitcnt lgkmcnt(0)')
                if cnt == 24: a('s_barrier')
                if 25 <= cnt <= 30:
                    k = [2, 0, 3, 4, 5, 1][cnt-25]
                    a(f'v_add_u32 v{vA_[k]}, s{sSLOT}, v{vB_[k]}')
        cnt = 0
        for ins in interleave(cmfmas(1,vori), creads(0,0), 0, 1):
            a(ins)
            if ins.startswith('v_mfma'):
                cnt += 1
                if cnt == 27: a(f's_add_u32 s{sS}, s{sS}, 1')
                if cnt == 28: a(f's_cmp_lt_u32 s{sS}, 10')
                if cnt == 30: a('s_waitcnt lgkmcnt(0)')
        a(f's_cbranch_scc1 {L}')
        stamp(a, 3)
        if vori: a('s_branch L_epiV')
        else: a(f's_cmp_eq_u32 s{sTY}, 3\ns_cbranch_scc1 L_epiH\ns_branch L_epiN')
    ST, CC, OUT = 128, 144, 212
    for relu in (False, True):
        a('L_epiH:' if relu else 'L_epiN:')
        a('s_barrier')
        if STOP == 1: stamp(a, 6)
        for tt in range(2): a(f'ds_read_b64 {v(ST+2*tt,2)}, v{vSA} offset:{L_STI+tt*128}')
        for ct in range(4): a(f'ds_read_b128 {v(CC+4*ct,4)}, v{vCA} offset:{ct*64}')
        for tt in range(2, 8): a(f'ds_read_b64 {v(ST+2*tt,2)}, v{vSA} offset:{L_STI+tt*128}')
        for tp in range(4):
            for ct in range(4):
                if tp == 0: a(f's_waitcnt lgkmcnt({9-ct})')
                if tp == 1 and ct == 0: a('s_waitcnt lgkmcnt(0)')
                o = OUT + 4*((tp*4+ct) % 4)
                ops = [[], [], [], []]
                for b in range(2):
                    tt = 2*tp+b; ac = ACC+4*(tt*4+ct)
                    for h in range(2):
                        ops[0].append(f'v_pk_fma_f32 {v(ac+2*h,2)}, {v(CC+4*ct+2*h,2)}, {v(ST+2*tt,2)}, {v(ac+2*h,2)} op_sel:[0,1,0] op_sel_hi:[1,1,1]')
                        ops[1].append(f'v_pk_mul_f32 {v(ac+2*h,2)}, {v(ac+2*h,2)}, {v(ST+2*tt,2)} op_sel:[0,0] op_sel_hi:[1,0]')
                        ops[2].append(f'v_cvt_pk_bf16_f32 v{o+2*b+h}, v{ac+2*h}, v{ac+2*h+1}')
                        if relu: ops[3].append(f'v_pk_max_i16 v{o+2*b+h}, v{o+2*b+h}, 0')
                for x in sum(ops, []): a(x)
                a(f'buffer_store_dwordx4 {v(o,4)}, v{VO+ct}, {s(RO1,4)}, s{sT0} offen {SC}')
            if tp < 3: a(f's_add_u32 s{sT0}, s{sT0}, s{sREC}')
        a('s_branch L_epi_done')
    SA, SB, CV = 128, 160, 192
    a('L_epiV:\ns_barrier')
    if STOP == 1: stamp(a, 6)
    for ct in range(4): a(f'ds_read_b32 v{CV+ct}, v{vCA} offset:{ct*64}')
    for tt in range(8):
        a(f'ds_read_b128 {v(SA+4*tt,4)}, v{vSA} offset:{L_STA+tt*64}')
        a(f'ds_read_b128 {v(SB+4*tt,4)}, v{vSA} offset:{L_STB+tt*64}')
    for tp in range(4):
        a(f's_waitcnt lgkmcnt({12-4*tp})')
        for ct in range(4):
            o = OUT + 4*((tp*4+ct) % 4)
            cp = CV + (ct & ~1); hi = ct & 1
            ops = [[], [], []]
            for b in range(2):
                tt = 2*tp+b; ac = ACC+4*(tt*4+ct)
                for h in range(2):
                    ops[0].append(f'v_pk_fma_f32 {v(ac+2*h,2)}, {v(SB+4*tt+2*h,2)}, {v(cp,2)}, {v(ac+2*h,2)} op_sel:[0,{hi},0] op_sel_hi:[1,{hi},1]')
                    ops[1].append(f'v_pk_mul_f32 {v(ac+2*h,2)}, {v(ac+2*h,2)}, {v(SA+4*tt+2*h,2)}')
                    ops[2].append(f'v_cvt_pk_bf16_f32 v{o+2*b+h}, v{ac+2*h}, v{ac+2*h+1}')
            for x in sum(ops, []): a(x)
            a(f'buffer_store_dwordx4 {v(o,4)}, v{VO+ct}, {s(RO1,4)}, s{sT0} offen {SC}')
        if tp < 3: a(f's_add_u32 s{sT0}, s{sT0}, s{sREC}')
    a('L_epi_done:\ns_setprio 1')
    stamp(a, 4)
    Sr = lambda q, par: 32*q + 16*par
    Or = lambda q: 64 + 16*q
    Pr = lambda q: 96 + 8*q
    Q1 = lambda q: 112 + 6*q
    Q2 = lambda q: 116 + 6*q
    KM, V0, V1 = 124, 128, 132
    KP = lambda t: 136 + 2*(t % 4)
    vK, vV = 144, 145
    T0 = 146
    sHEAD, sTQ, sSEC, sTG, sC, sHB = 44, 45, 46, 47, 48, 49
    RQ, RKV, RO, RF = R1, R2, R3, R4
    srd(RF, pWS, WS_ST, WS_END-WS_ST); srd(RQ, pWS, WS_Q, WS_Q_SZ); srd(RKV, pWS, WS_KV, WS_KV_SZ); srd(RO, pWS, WS_O, WS_O_SZ)
    a(f'''
    s_lshr_b32 s{sT}, s{sJ}, 3
    s_lshl_b32 s{sHEAD}, s{sXCD}, 2
    s_add_u32 s{sHEAD}, s{sHEAD}, s{sT}
    s_mul_i32 s{sHB}, s{sHEAD}, {HSK}
    s_and_b32 s{sTQ}, s{sJ}, 7
    s_lshl_b32 s{sTQ}, s{sTQ}, 3
    s_lshl_b32 s{sT}, s{sWV}, 1
    s_add_u32 s{sTQ}, s{sTQ}, s{sT}
    v_and_b32 v{T0}, 31, v{LANE}            ; rho / n
    v_lshrrev_b32 v{T0+1}, 5, v{LANE}       ; h
    v_subrev_u32 v{T0+2}, 16, v{T0}
    v_lshrrev_b32 v{T0+3}, 2, v{T0+2}
    v_mul_u32_u24 v{T0+3}, 20, v{T0+3}
    v_add3_u32 v{T0+3}, v{T0+3}, v{T0+2}, 36
    v_cmp_gt_u32 vcc, 16, v{T0}
    v_and_b32 v{T0+4}, 3, v{T0}
    v_cmp_eq_u32 s[50:51], 0, v{T0+4}
    v_cndmask_b32 v{T0+3}, v{T0+3}, v{T0}, vcc
    v_add_u32 v{T0+3}, 80, v{T0+3}
    v_mul_u32_u24 v{T0+4}, {TI//16}, v{T0+1}
    v_add_u32 v{T0+3}, v{T0+3}, v{T0+4}
    s_mul_i32 s{sT}, s{sWV}, {CH}
    v_lshl_add_u32 v{T0+3}, v{T0+3}, 4, s{sT}
    v_mov_b32 v{T0+4}, {ONE}
    v_mov_b32 v{T0+5}, 0x3f80
    v_cndmask_b32 v{T0+7}, 0, v{T0+4}, s[50:51]
    v_cndmask_b32 v{T0+6}, v{T0+7}, v{T0+4}, vcc
    v_cndmask_b32 v{T0+7}, v{T0+7}, v{T0+5}, vcc
    v_mov_b32 v{T0+8}, v{T0+6}
    v_mov_b32 v{T0+9}, v{T0+7}
    ds_write_b128 v{T0+3}, {v(T0+6,4)}
    ds_write_b128 v{T0+3}, {v(T0+6,4)} offset:{2*TI}
    v_mov_b32 v{T0+3}, {L_CNT}
    v_mov_b32 v{T0+2}, 0
    ds_write_b32 v{T0+3}, v{T0+2}
    s_mov_b32 s{sSEC}, 0
    v_and_b32 v{T0+2}, 7, v{T0}
    v_lshlrev_b32 v{T0+2}, 1, v{T0+2}
    v_and_b32 v{T0+3}, 16, v{T0}
    v_bfe_u32 v{T0+4}, v{T0}, 3, 1
    v_add3_u32 v{T0+2}, v{T0+2}, v{T0+3}, v{T0+4}
    v_lshlrev_b32 v{T0+2}, 3, v{T0+2}
    v_lshl_add_u32 v{vK}, v{T0+1}, 8, v{T0+2}
    v_min_u32 v{T0+4}, 21, v{T0}
    v_mul_u32_u24 v{T0+3}, 384, v{T0+1}
    v_lshl_add_u32 v{T0+3}, v{T0+4}, 4, v{T0+3}
    v_add_u32 v{vV}, 1536, v{T0+3}
    v_lshlrev_b32 v{T0+10}, 3, v{LANE}               ; h*256 + n*8
    v_lshlrev_b32 v{T0+2}, 3, v{T0}
    v_lshl_add_u32 v{T0+11}, v{T0+1}, 30, v{T0+2}
    s_lshl_b32 s{sT}, s{sCG}, 3
    s_add_u32 s{sT}, s{sT}, s{sMB}
    s_lshl_b32 s{sT}, s{sT}, {FSH}
    s_add_u32 s{sT}, s{sT}, {WS_F1-WS_ST}
    v_mov_b32 v{T0+13}, s{sT}
    v_mov_b32 v{T0+14}, 1
    ''')
    for i in range(32): a(f'v_mov_b32 v{Or(0)+i}, 0')
    for i in range(4): a(f'v_mov_b32 v{V1+i}, 0')
    a(f'''
    v_mov_b32 v{Pr(1)+4}, 0
    v_mov_b32 v{Pr(1)+5}, 0
    s_mov_b32 s51, 0xffff
    s_mov_b32 s{sC}, 0
    s_mov_b32 s{sTG}, {2*CH}
    s_mul_i32 s{sT}, s{sHEAD}, {HSQ}
    s_mul_i32 s{sT2}, s{sTQ}, 1280
    s_add_u32 s{sT2}, s{sT2}, s{sT}
    s_waitcnt vmcnt(0) lgkmcnt(0)
    ''')
    stamp(a, 5)
    a(f'''
    s_barrier
    s_cmp_lg_u32 s{sWV}, 0
    s_cbranch_scc1 L_a_noflag
    s_mov_b64 exec, 1
    buffer_store_dword v{T0+14}, v{T0+13}, {s(RF,4)}, 0 offen sc1
    s_mov_b64 exec, -1
    L_a_noflag:
    ''')
    if STOP == 1: a('s_branch L_fin')
    a('s_barrier')
    stamp(a, 6)
    for q in range(2):
        a(f'''
        buffer_load_dwordx2 {v(Q1(q),2)}, v{T0+10}, {s(RQ,4)}, s{sT2} offen offset:{1280*q}
        buffer_load_dwordx2 {v(Q1(q)+2,2)}, v{T0+10}, {s(RQ,4)}, s{sT2} offen offset:{1280*q+512}
        buffer_load_dwordx2 {v(Q2(q),2)}, v{T0+11}, {s(RQ,4)}, s{sT2} offen offset:{1280*q+1024}
        ''')
    def rK(t, km=KM): return f'ds_read2st64_b64 {v(km,4)}, v{vK} offset0:{6*t} offset1:{6*t+1}'
    def rP(t): return f'ds_read2st64_b64 {v(KP(t),4)}, v{vK} offset0:{6*t+2} offset1:{6*t+8}'
    def rV(t, aa): return f'ds_read_b128 {v(V1 if aa else V0,4)}, v{vV} offset:{t*TI+aa*768}'
    def qk1(q, par, km=KM): return f'v_mfma_f32_32x32x16_bf16 {v(Sr(q,par),16)}, {v(km,4)}, {v(Q1(q),4)}, 0'
    def qk2(q, par, t): return f'v_mfma_f32_32x32x8_bf16 {v(Sr(q,par),16)}, {v(KP(t),2)}, {v(Q2(q),2)}, {v(Sr(q,par),16)}'
    def pv(q, aa): return f'v_mfma_f32_32x32x16_bf16 {v(Or(q),16)}, {v(V1 if aa else V0,4)}, {v(Pr(q)+4*aa,4)}, {v(Or(q),16)}'
    M0, M1_ = T0+8, T0+9
    NM = T0+6
    def maxtree(q, par, first):
        sr = Sr(q,par); m = M0+q
        L = []
        if first: L.append(f'v_max3_f32 v{m}, v{sr}, v{sr+1}, v{sr+2}'); L.append(f'v_max_f32 v{m}, v{m}, v{sr+3}'); st = 4
        else: st = 0
        for i in range(st, 16, 2): L.append(f'v_max3_f32 v{m}, v{m}, v{sr+i}, v{sr+i+1}')
        return L
    def set_m():
        a(f'''
        v_mov_b32 v{T0}, v{M0}
        v_mov_b32 v{T0+1}, v{M1_}
        s_mov_b32 s50, {f2u(-DOFF)}
        v_cmp_lt_u32 vcc, 31, v{LANE}
        v_permlane32_swap_b32 v{T0}, v{M0}
        v_permlane32_swap_b32 v{T0+1}, v{M1_}
        s_nop 0
        v_max_f32 v{M0}, v{M0}, v{T0}
        v_max_f32 v{M1_}, v{M1_}, v{T0+1}
        v_sub_f32 v{NM}, s50, v{M0}
        v_sub_f32 v{NM+1}, s50, v{M1_}
        ''')
        for q in range(2):
            m = M0+q; t = T0+3*q
            a(f'''
            v_cvt_pk_bf16_f32 v{t}, v{NM+q}, v{NM+q}
            v_and_b32 v{t+1}, 0xffff0000, v{t}
            v_sub_f32 v{m}, v{NM+q}, v{t+1}
            v_cvt_pk_bf16_f32 v{t+1}, v{m}, v{m}
            v_and_b32 v{t+2}, 0xffff0000, v{t+1}
            v_sub_f32 v{m}, v{m}, v{t+2}
            v_cvt_pk_bf16_f32 v{m}, v{m}, 0
            v_and_or_b32 v{t}, v{t}, s51, v{t+2}
            v_cndmask_b32 v{Q2(q)}, v{Q2(q)}, v{t}, vcc
            v_cndmask_b32 v{Q2(q)+1}, v{Q2(q)+1}, v{m}, vcc
            ''')
    a('s_barrier')
    stamp(a, 7)
    KM2 = T0+12
    a(rK(0,KM2)); a(rP(0)); a(rK(1)); a(rV(0,0))
    a('s_waitcnt vmcnt(0) lgkmcnt(2)')
    a(qk1(0,0,KM2)); a(qk1(1,0,KM2)); a(qk2(0,0,0)); a(qk2(1,0,0))
    a('s_waitcnt lgkmcnt(1)')
    a(qk1(0,1)); a(qk1(1,1)); a(qk2(0,1,1)); a(qk2(1,1,1))
    a('s_nop 6')
    for x in maxtree(0,0,True) + maxtree(1,0,True): a(x)
    for x in maxtree(0,1,False) + maxtree(1,1,False): a(x)
    for i in range(4): a(f'v_mov_b32 v{Sr(1,1)+12+i}, 0')
    set_m()
    for q in range(2):
        for i in range(16): a(f'v_add_f32 v{Sr(q,0)+i}, v{NM+q}, v{Sr(q,0)+i}')
    stamp(a, 8)
    a('.p2align 6\nL_aloop:')
    for jj in range(8):
        par = jj & 1; nx = 1-par
        e = lambda q, i: f'v_exp_f32 v{Sr(q,par)+i}, v{Sr(q,par)+i}'
        c = lambda q, p_, i: f'v_cvt_pk_bf16_f32 v{Pr(q)+i}, v{Sr(q,p_)+2*i}, v{Sr(q,p_)+2*i+1}'
        ev = (jj % 2 == 0)
        ms = [(qk1(0,nx), []),
              (pv(1,1), [rV(jj, 1)]),
              (qk2(0,nx,jj+1), ['s_waitcnt lgkmcnt(1)']),
              (pv(0,0), [rP((jj+2) % 8)] if ev else []),
              (qk1(1,nx), [f's_waitcnt lgkmcnt({1 if ev else 0})', rK((jj+2) % 8)]),
              (pv(0,1), ['s_barrier'] if jj in (1,5) else []),
              (qk2(1,nx,jj+1), []),
              (pv(1,0), ['s_waitcnt lgkmcnt(0)', rV((jj+1) % 8, 0)])]
        if jj == 6: ms[0][1].append(f'v_add_u32 v{vK}, s{sTG}, v{vK}')
        if jj == 7:
            ms[3][1].append(f'v_add_u32 v{vV}, s{sTG}, v{vV}')
            ms[0][1].append(f's_add_u32 s{sC}, s{sC}, 1')
            ms[5][1].append(f's_sub_u32 s{sTG}, 0, s{sTG}')
            ms[6][1].append(f's_cmp_lt_u32 s{sC}, 8')
        for g in range(8):
            q = g >> 2; b = 4*(g & 3)
            m, xs = ms[g]
            for i in range(4): a(e(q,b+i))
            a(m)
            for x in xs: a(x)
            if g == 0: a(c(1,nx,6)); a(c(1,nx,7))
            elif g == 4: a(c(0,par,6)); a(c(0,par,7))
            else: a(c(q,par,2*(g&3)-2)); a(c(q,par,2*(g&3)-1))
    a('s_cbranch_scc1 L_aloop')
    stamp(a, 9)
    a(f'v_cvt_pk_bf16_f32 v{Pr(1)+6}, v{Sr(1,1)+12}, v{Sr(1,1)+13}\nv_cvt_pk_bf16_f32 v{Pr(1)+7}, v{Sr(1,1)+14}, v{Sr(1,1)+15}')
    a(f'v_mov_b32 v{T0+2}, 0\nv_mov_b32 v{T0+3}, 0')
    a(pv(1,1))
    a(f'''
    L_merge:
    s_mov_b32 s50, {f2u(2.0**-8)}
    s_mov_b32 s53, {f2u(2.0**118)}
    s_mul_i32 s{sT}, s{sTQ}, {RECO}
    s_mul_i32 s{sT2}, s{sHEAD}, 1280
    s_add_u32 s{sT}, s{sT}, s{sT2}
    s_add_u32 s{sT2}, s{sT}, {RECO}
    v_lshlrev_b32 v{T0+6}, 4, v{LANE}
    v_lshrrev_b32 v{T0+7}, 5, v{LANE}
    v_lshlrev_b32 v{T0+7}, 30, v{T0+7}
    v_lshl_add_u32 v{T0+7}, v{LANE}, 3, v{T0+7}
    v_mov_b32 v{T0}, v{Or(0)+8}
    v_mov_b32 v{T0+1}, v{Or(0)+8}
    ''')
    for i in range(12): a(f'v_fma_f32 v{T0+2}, abs(v{Or(0)+i}), s50, v{T0+2}')
    a(f'v_permlane32_swap_b32 v{T0}, v{T0+1}\nv_mov_b32 v{T0+4}, v{Or(1)+8}\nv_mov_b32 v{T0+5}, v{Or(1)+8}\nv_rcp_f32 v{T0+1}, v{T0+1}')
    for i in range(12): a(f'v_fma_f32 v{T0+3}, abs(v{Or(1)+i}), s50, v{T0+3}')
    a(f'''
    v_permlane32_swap_b32 v{T0+4}, v{T0+5}
    v_add_f32 v{T0+2}, v{T0+2}, v{T0+3}
    v_cmp_ngt_f32 vcc, s53, v{T0+2}
    v_rcp_f32 v{T0+5}, v{T0+5}
    ''')
    for i in range(12): a(f'v_mul_f32 v{Or(0)+i}, v{Or(0)+i}, v{T0+1}')
    a(f'''
    s_cmp_lg_u32 s{sSEC}, 0
    s_cbranch_scc1 L_safe
    s_cbranch_vccnz L_fallback
    L_safe:
    ''')
    for q in range(2):
        if q:
            for i in range(12): a(f'v_mul_f32 v{Or(q)+i}, v{Or(q)+i}, v{T0+5}')
        for i in range(6): a(f'v_cvt_pk_bf16_f32 v{Pr(q)+i}, v{Or(q)+2*i}, v{Or(q)+2*i+1}')
        a(f'''
        buffer_store_dwordx4 {v(Pr(q),4)}, v{T0+6}, {s(RO,4)}, s{sT2 if q else sT} offen {SC}
        buffer_store_dwordx2 {v(Pr(q)+4,2)}, v{T0+7}, {s(RO,4)}, s{sT2 if q else sT} offen offset:1024 {SC}
        ''')
    a(f'''
    s_and_b32 s{sT}, s{sJ}, 7
    s_lshl_b32 s{sT}, s{sT}, 5
    s_add_u32 s{sT}, s{sT}, s{sHEAD}
    s_lshl_b32 s{sT}, s{sT}, {FSH}
    s_add_u32 s{sT}, s{sT}, {WS_F2-WS_ST}
    v_mov_b32 v{T0}, s{sT}
    v_mov_b32 v{T0+1}, 1
    v_mov_b32 v{T0+2}, {L_CNT}
    s_waitcnt vmcnt(0)
    ''')
    stamp(a, 10)
    a(f'''
    s_mov_b64 exec, 1
    ds_add_rtn_u32 v{T0+3}, v{T0+2}, v{T0+1}
    s_waitcnt lgkmcnt(0)
    v_readfirstlane_b32 s50, v{T0+3}
    s_cmp_lg_u32 s50, 3
    s_cbranch_scc1 L_a_noflag2
    buffer_store_dword v{T0+1}, v{T0}, {s(RF,4)}, 0 offen sc1
    L_a_noflag2:
    s_mov_b64 exec, -1
    s_setprio 0
    ''')
    if STOP == 2: a('s_branch L_fin')
    RX, ROUT = R0, R1
    srd(RX, pX, 0, S*D*2); srd(ROUT, pOUT, 0, S*D*2)
    XD, GO, LO = 100, 110, 115
    a(f'''
    s_lshr_b32 s{sT}, s{sXCD}, 1
    s_lshl_b32 s{sT}, s{sT}, 3
    s_lshr_b32 s{sT2}, s{sJ}, 2
    s_add_u32 s{sT}, s{sT}, s{sT2}
    s_mul_i32 s{sT}, s{sT}, {64*1280}
    s_and_b32 s{sT2}, s{sXCD}, 1
    s_lshl_b32 s{sT2}, s{sT2}, 2
    s_and_b32 s50, s{sJ}, 3
    s_add_u32 s{sT2}, s{sT2}, s50
    s_mul_i32 s{sT2}, s{sT2}, 160
    s_add_u32 s{sT}, s{sT}, s{sT2}
    ''')
    for r in range(5):
        a(f'''
        v_add_u32 v{T0}, {64*r}, v{LANE}
        v_mul_u32_u24 v{T0+1}, 3277, v{T0}
        v_lshrrev_b32 v{T0+1}, 16, v{T0+1}
        v_mul_u32_u24 v{T0+2}, 20, v{T0+1}
        v_sub_u32 v{T0}, v{T0}, v{T0+2}             ; c4
        v_lshl_add_u32 v{T0+1}, s{sWV}, 4, v{T0+1}  ; position 0..63
        v_mul_u32_u24 v{T0+2}, {RS}, v{T0+1}
        v_lshl_add_u32 v{T0+2}, v{T0}, 4, v{T0+2}
        v_add_u32 v{LO+2*r}, {L_B}, v{T0+2}
        v_add_u32 v{LO+2*r+1}, {L_B+2*BW}, v{T0+2}
        v_and_b32 v{T0+2}, 1, v{T0+1}
        v_lshlrev_b32 v{T0+2}, 4, v{T0+2}
        v_bfe_u32 v{T0+3}, v{T0+1}, 1, 4
        v_and_b32 v{T0+1}, 32, v{T0+1}
        v_add3_u32 v{T0+1}, v{T0+1}, v{T0+2}, v{T0+3}
        v_mul_u32_u24 v{T0+1}, 1280, v{T0+1}
        v_lshl_add_u32 v{GO+r}, v{T0}, 3, v{T0+1}
        buffer_load_dwordx2 {v(XD+2*r,2)}, v{GO+r}, {s(RX,4)}, s{sT} offen
        ''')
    a('s_waitcnt vmcnt(0)')
    XU = 80
    for r in range(5):
        for j in range(2):
            a(f'v_lshlrev_b32 v{XU+4*r+2*j}, 16, v{XD+2*r+j}\nv_and_b32 v{XU+4*r+2*j+1}, 0xffff0000, v{XD+2*r+j}')
    a('s_barrier\ns_barrier')
    stamp(a, 11)
    for r in range(5):
        R = 16*r
        a(f'''
        ds_read_b128 {v(R,4)}, v{LO+2*r}
        ds_read_b128 {v(R+4,4)}, v{LO+2*r} offset:{BW}
        ds_read_b128 {v(R+8,4)}, v{LO+2*r+1}
        ds_read_b128 {v(R+12,4)}, v{LO+2*r+1} offset:{BW}
        ''')
        if r >= 2:
            pass
    for r in range(5):
        R = 16*r
        a(f's_waitcnt lgkmcnt({min(15, 16-4*r)})' if r else 's_waitcnt lgkmcnt(15)')
        if r == 0: a('s_waitcnt lgkmcnt(12)')
        for i in range(4): a(f'v_add_f32 v{R+i}, v{R+i}, v{R+4+i}')
        for i in range(4): a(f'v_add_f32 v{R+8+i}, v{R+8+i}, v{R+12+i}')
        for i in range(4): a(f'v_add_f32 v{R+i}, v{R+i}, v{XU+4*r+i}')
        for i in range(4): a(f'v_add_f32 v{R+i}, v{R+i}, v{R+8+i}')
        a(f'v_cvt_pk_bf16_f32 v{R+4}, v{R}, v{R+1}\nv_cvt_pk_bf16_f32 v{R+5}, v{R+2}, v{R+3}')
        a(f'buffer_store_dwordx2 {v(R+4,2)}, v{GO+r}, {s(ROUT,4)}, s{sT} offen')
    a('s_branch L_fin')
    sWID = 44
    XD, CD, CA, P_ = 8, 68, 180, 190
    a(f"""
    L_stats:
    s_mul_i32 s{sWID}, s{sXCD}, 3
    s_add_u32 s{sWID}, s{sWID}, s{sJ}
    s_and_b32 s45, s{sWID}, 3
    s_lshl_b32 s{sWID}, s{sWID}, 3
    s_add_u32 s{sWID}, s{sWID}, s{sWV}
    v_lshrrev_b32 v2, 4, v{LANE}
    v_lshl_add_u32 v2, s{sWID}, 2, v2        ; row
    v_and_b32 v3, 15, v{LANE}
    v_lshlrev_b32 v4, 3, v2
    v_mul_u32_u24 v2, 1280, v2
    v_lshl_add_u32 v2, v3, 4, v2
    s_mul_i32 s46, s{sWID}, 171
    s_lshr_b32 s46, s46, 9
    s_mul_i32 s47, s46, 3
    s_sub_u32 s47, s{sWID}, s47
    s_cmp_lt_u32 s46, 30
    s_movk_i32 s48, 3456
    s_cselect_b32 s48, 3840, s48
    s_cselect_b32 s49, 0, 30
    s_sub_u32 s49, s46, s49
    s_lshl_b32 s49, s49, 7
    s_mul_i32 s50, s47, 216
    v_lshrrev_b32 v5, 3, v{LANE}
    v_add_u32 v5, s50, v5
    v_mul_u32_u24 v5, s48, v5
    v_and_b32 v6, 7, v{LANE}
    v_lshl_add_u32 v5, v6, 4, v5
    s_mul_i32 s{R1+2}, s48, 640
    s_mov_b32 s{R1+3}, 0x20000
    s_lshl_b32 s48, s48, 3
    s_cmp_ge_u32 s46, 57
    s_cselect_b32 s49, 0x40000000, s49
    s_cmp_lt_u32 s46, 30
    s_waitcnt lgkmcnt(0)
    s_cselect_b32 s{R1}, s{pWQ}, s{pW1}
    s_cselect_b32 s{R1+1}, s{pWQ+1}, s{pW1+1}
    """)
    srd(R0, pX, 0, S*D*2); srd(R3, pWS, WS_ST, WS_END-WS_ST); srd(R4, pDBG, 0, 256)
    for k in range(3):
        a(f's_mov_b32 s50, {k*768*1280}')
        for n in range(5): a(f'buffer_load_dwordx4 {v(XD+20*k+4*n,4)}, v2, {s(R0,4)}, s50 offen offset:{256*n}')
    for n in range(27): a(f'buffer_load_dwordx4 {v(CD+4*n,4)}, v5, {s(R1,4)}, s49 offen\ns_add_u32 s49, s49, s48')
    a(f"""
    s_mul_i32 s50, s{sWID}, 3
    v_add_u32 v6, s50, v{LANE}
    v_lshlrev_b32 v6, {FSH}, v6
    v_add_u32 v6, {WS_F1-WS_ST}, v6
    v_mov_b32 v7, 0
    s_mov_b64 exec, 7
    buffer_store_dword v7, v6, {s(R3,4)}, 0 offen {SC}
    s_mov_b64 exec, -1
    s_mov_b32 s50, {ONE}
    s_mov_b32 s51, 0x3f80
    s_mov_b32 s52, 0x3f800000
    """)
    for e in range(8): a(f'v_mov_b32 v{CA+e}, 0')
    for i in range(12): a(f'v_mov_b32 v{P_+i}, 0')
    for k in range(3):
        a(f's_waitcnt vmcnt({38-5*k})')
        for i in range(20):
            a(f'v_dot2_f32_bf16 v{P_+4*k+(i&1)}, v{XD+20*k+i}, s50, v{P_+4*k+(i&1)}')
            a(f'v_dot2_f32_bf16 v{P_+4*k+2+(i&1)}, v{XD+20*k+i}, v{XD+20*k+i}, v{P_+4*k+2+(i&1)}')
    a('s_nop 2')
    for i in range(6): a(f'v_add_f32 v{P_+2*i}, v{P_+2*i}, v{P_+2*i+1}')
    for pat in ('quad_perm:[1,0,3,2]', 'quad_perm:[2,3,0,1]', 'row_half_mirror', 'row_mirror'):
        for i in range(6): a(f'v_add_f32_dpp v{P_+2*i}, v{P_+2*i}, v{P_+2*i} {pat} row_mask:0xf bank_mask:0xf')
    for k in range(3): a(f'v_mul_f32 v{P_+4*k+1}, {f2u(-1.0/640)}, v{P_+4*k}')
    for k in range(3): a(f'v_mul_f32 v{P_+4*k+2}, {f2u(1.0/640)}, v{P_+4*k+2}')
    for k in range(3): a(f'v_fma_f32 v{P_+4*k+2}, -v{P_+4*k+1}, v{P_+4*k+1}, v{P_+4*k+2}')
    for k in range(3): a(f'v_max_f32 v{P_+4*k+2}, 0, v{P_+4*k+2}')
    for k in range(3): a(f'v_add_f32 v{P_+4*k+2}, {f2u(1e-5)}, v{P_+4*k+2}')
    for k in range(3): a(f'v_rsq_f32 v{P_+4*k}, v{P_+4*k+2}')
    a(f"""
    s_cmp_lt_u32 s{sWID}, 128
    s_cselect_b32 s53, {2*768*8}, 0x40000000
    s_movk_i32 s54, {768*8}
    s_mov_b32 exec_lo, 0x10001
    s_mov_b32 exec_hi, 0x10001
    buffer_store_dwordx2 {v(P_,2)}, v4, {s(R3,4)}, 0 offen {SC}
    buffer_store_dwordx2 {v(P_+4,2)}, v4, {s(R3,4)}, s54 offen {SC}
    buffer_store_dwordx2 {v(P_+8,2)}, v4, {s(R3,4)}, s53 offen {SC}
    s_mov_b64 exec, -1
    """.replace(f's_cselect_b32 s53, {2*768*8}, 0x40000000', f's_mov_b32 s53, 0x40000000\ns_cselect_b32 s53, {2*768*8}, s53'))
    for n in range(27):
        if n % 3 == 0: a(f's_waitcnt vmcnt({28-n})')
        for j in range(4):
            a(f'v_dot2_f32_bf16 v{CA+2*j}, v{CD+4*n+j}, s51, v{CA+2*j}\nv_dot2_f32_bf16 v{CA+2*j+1}, v{CD+4*n+j}, s52, v{CA+2*j+1}')
    a('s_nop 1')
    a('s_nop 1')
    for e in range(4): a(f'v_permlane32_swap_b32 v{CA+e}, v{CA+e+4}')
    a('s_nop 0')
    for e in range(4): a(f'v_add_f32 v{CA+e}, v{CA+e}, v{CA+e+4}')
    a('s_nop 1')
    for e in range(2): a(f'v_permlane16_swap_b32 v{CA+e}, v{CA+e+2}')
    a('s_nop 0')
    for e in range(2): a(f'v_add_f32 v{CA+e}, v{CA+e}, v{CA+e+2}')
    a(f"""
    v_and_b32 v2, 8, v{LANE}
    v_cmp_ne_u32 vcc, 0, v2
    v_add_f32_dpp v{CA}, v{CA}, v{CA} row_ror:8 row_mask:0xf bank_mask:0xf
    v_add_f32_dpp v{CA+1}, v{CA+1}, v{CA+1} row_ror:8 row_mask:0xf bank_mask:0xf
    v_and_b32 v3, 7, v{LANE}
    v_lshrrev_b32 v4, 5, v{LANE}
    v_lshl_add_u32 v3, v3, 1, v4
    v_cndmask_b32 v{CA}, v{CA}, v{CA+1}, vcc
    v_bfe_u32 v4, v{LANE}, 4, 1
    v_lshrrev_b32 v2, 1, v2
    v_lshl_add_u32 v4, v4, 3, v2
    v_lshl_add_u32 v3, v3, 4, v4            ; 4 * column
    s_lshl_b32 s49, s46, 8
    s_mul_i32 s47, s47, {CPS}
    s_add_u32 s49, s49, s47
    s_add_u32 s49, s49, {WS_CP-WS_ST}
    s_cmp_ge_u32 s46, 57
    s_cselect_b32 s49, 0x40000000, s49
    buffer_store_dword v{CA}, v3, {s(R3,4)}, s49 offen {SC}
    v_and_b32 v94, 3, v{LANE}
    v_lshlrev_b32 v94, 6, v94
    s_lshl_b32 s45, s45, 6
    v_mov_b32 v2, s45
    v_mov_b32 v3, 1
    s_waitcnt vmcnt(0)
    """)
    stamp(a, 1)
    a(f"""
    s_barrier
    s_cmp_lg_u32 s{sWV}, 4
    s_cbranch_scc1 L_st_join
    s_mov_b64 exec, 1
    buffer_atomic_add v3, v2, {s(R4,4)}, 0 offen sc1
    """)
    poll('p0s', 94, 93, R4, 6, 0xF, nap=1, pre='s_sleep 40')
    a(f"""
    L_st_join:
    s_mov_b32 s{sCG}, 29
    s_mov_b32 s{sMB}, s{sJ}
    s_cmp_lt_u32 s{sWV}, 4
    s_cbranch_scc1 L_epi_done
    s_sub_u32 s44, s{sWV}, 4
    s_branch L_b_phase2
    """)
    gV = T0+12
    a(f'''
    L_fallback:
    s_waitcnt lgkmcnt(0)
    s_mov_b32 s{sSEC}, 1
    v_and_b32 v{T0}, 31, v{LANE}
    v_lshrrev_b32 v{T0+1}, 5, v{LANE}
    v_lshlrev_b32 v{T0+1}, 6, v{T0+1}
    v_lshrrev_b32 v{T0+2}, 2, v{T0}
    v_lshl_add_u32 v{T0+1}, v{T0+2}, 8, v{T0+1}
    v_and_b32 v{T0+2}, 3, v{T0}
    v_lshl_add_u32 v{gV}, v{T0+2}, 4, v{T0+1}
    v_cmp_eq_u32 s[54:55], 20, v{T0}
    v_cmp_lt_u32 vcc, 31, v{LANE}
    v_mov_b32 v{M0}, 0xff800000
    v_mov_b32 v{M1_}, 0xff800000
    v_mov_b32 v{KP(0)}, {ONE}
    v_mov_b32 v{KP(0)+1}, 0x3f80
    ''')
    for i in range(8): a(f'v_cndmask_b32 v{V0+i}, 0, v{KP(0)}, s[54:55]')
    for q in range(2):
        for i in range(2): a(f'v_cndmask_b32_e64 v{Q2(q)+i}, v{Q2(q)+i}, 0, vcc')
    def ldK():
        a(f'''
        buffer_load_dwordx2 {v(KM,2)}, v{vK}, {s(RKV,4)}, s{sT} offen
        buffer_load_dwordx2 {v(KM+2,2)}, v{vK}, {s(RKV,4)}, s{sT} offen offset:512
        s_mov_b32 exec_hi, 0
        buffer_load_dwordx2 {v(KP(0),2)}, v{vK}, {s(RKV,4)}, s{sT} offen offset:1024
        s_mov_b32 exec_hi, -1
        ''')
    a(f's_mov_b32 s{sT}, s{sHB}\ns_mov_b32 s{sC}, 0\nL_fb1:')
    ldK()
    a('s_waitcnt vmcnt(0)')
    a(qk1(0,0)); a(qk1(1,0)); a(qk2(0,0,0)); a(qk2(1,0,0))
    a('s_nop 15')
    for x in maxtree(0,0,False) + maxtree(1,0,False): a(x)
    a(f'''
    s_add_u32 s{sT}, s{sT}, {KVREC}
    s_add_u32 s{sC}, s{sC}, 1
    s_cmp_lt_u32 s{sC}, 64
    s_cbranch_scc1 L_fb1
    ''')
    set_m()
    for i in range(32): a(f'v_mov_b32 v{Or(0)+i}, 0')
    a(f's_mov_b32 s{sT}, s{sHB}\ns_mov_b32 s{sC}, 0\nL_fb2:')
    ldK()
    a(f'''
    s_mov_b32 exec_lo, 0xfffff
    s_mov_b32 exec_hi, 0xfffff
    buffer_load_dwordx4 {v(V0,4)}, v{gV}, {s(RKV,4)}, s{sT} offen offset:1280
    buffer_load_dwordx4 {v(V1,4)}, v{gV}, {s(RKV,4)}, s{sT} offen offset:1408
    s_mov_b64 exec, -1
    s_waitcnt vmcnt(0)
    ''')
    a(qk1(0,0)); a(qk1(1,0)); a(qk2(0,0,0)); a(qk2(1,0,0))
    a('s_nop 15')
    for q in range(2):
        for i in range(16): a(f'v_exp_f32 v{Sr(q,0)+i}, v{Sr(q,0)+i}')
    for q in range(2):
        for i in range(8): a(f'v_cvt_pk_bf16_f32 v{Pr(q)+i}, v{Sr(q,0)+2*i}, v{Sr(q,0)+2*i+1}')
    a('s_nop 1')
    a(pv(0,0)); a(pv(1,0)); a(pv(0,1)); a(pv(1,1))
    a(f'''
    s_add_u32 s{sT}, s{sT}, {KVREC}
    s_add_u32 s{sC}, s{sC}, 1
    s_cmp_lt_u32 s{sC}, 64
    s_cbranch_scc1 L_fb2
    v_mov_b32 v{T0+2}, 0
    v_mov_b32 v{T0+3}, 0
    s_nop 7
    s_branch L_merge
    L_fin:
    ''')
    stamp(a, 12)
    if STAMPS: a('s_waitcnt vmcnt(0)')
    stamp(a, 13); stamp(a, 15, True)
    stamp_dump(a, sWV, 16, 42, 0, 250)
    a('L_end:\ns_endpgm')
    return a.text(), kernel_desc(name, 256).replace('denorm_mode_32 3', 'denorm_mode_32 0')

if __name__ == '__main__':
    import sys
    KN = 'parallel_sum__mha_block__dense_activation_relu__prompt_kernel'
    HDR = open('parallel_sum__mha_block__dense_activation_relu__prompt.s.ref').read().split('; Override')[0]
    t, d = gen_kg(KN)
    open(sys.argv[1], 'w').write(HDR + f'; @launch grid=(256,1,1) block=({KF_THREADS},1,1) lds={KF_LDS}\n.amdgcn_target "amdgcn-amd-amdhsa--gfx950"\n' + t + d)
```

```python
from asmlib import *
import math, struct, os
def f2u(x): return struct.unpack('<I', struct.pack('<f', x))[0]
E = lambda k, d: int(os.environ.get(k, d))
STOP = E('KF_STOP', 0)
HST = E('KF_HST', 0)
MPF = E('KF_MPF', 4)
CMODE = E('KF_CM', 0)
NOX = E('KF_NOX', 0)
CPOS = E('KF_CPOS', 5)
CPF = E('KF_CPF', 1)


KF_THREADS = 512
XSZ = 256*128; WSZ = 64*256; SLOT = XSZ + WSZ
TI = 3072; CH = 4*TI; L_B = 4*CH; BSL = 9216; BW = 3*BSL; RS = 336
L_ST = L_B + 4*BW
L_STI, L_STA, L_STB, L_CF = 0, 0, 1024, 2048
L_CNT = L_ST + 2560
KF_LDS = L_CNT + 64
QSCALE = math.log2(math.e)/math.sqrt(20.0)
DOFF = 88.0
ONE = 0x3f803f80
SPIN = 1 << 15
SC = 'sc1'
CPS = 3712*4

def gen_kg(name):
    a = Asm()
    a(kernel_header(name))
    pX, pWQ, pWO, pWS, pW1, pW2, pOUT, pDBG = 4, 6, 40, 42, 56, 58, 60, 62
    R0, R1, R2, R3, R4, R5 = 8, 12, 16, 20, 24, 28
    sWV, sMB, sCG, sTY, sXCD, sJ = 32, 33, 34, 35, 36, 37
    sT, sT2 = 38, 39
    LANE = 255
    def srd(r, ptr, off, size):
        if off: a(f's_add_u32 s{r}, s{ptr}, {off}\ns_addc_u32 s{r+1}, s{ptr+1}, 0')
        else: a(f's_mov_b32 s{r}, s{ptr}\ns_mov_b32 s{r+1}, s{ptr+1}')
        a(f's_mov_b32 s{r+2}, {size}\ns_mov_b32 s{r+3}, 0x20000')
    def poll(tag, vaddr, vdat, R, want, mask, soff='0', nap=None, pre=''):
        L = a.label('poll_'+tag); Ld = a.label('polled_'+tag)
        a(f'''
        {f's_mov_b64 exec, {mask}' if isinstance(mask, str) else f's_mov_b32 exec_lo, {mask & 0xffffffff}'}
        {'' if isinstance(mask, str) else f's_mov_b32 exec_hi, {mask >> 32}'}
        s_mov_b32 s53, 0
        {L}:
        {pre}
        buffer_load_dword v{vdat}, v{vaddr}, {s(R,4)}, {soff} offen sc1
        s_add_u32 s53, s53, 1
        s_waitcnt vmcnt(0)
        v_cmp_gt_u32 vcc, {want}, v{vdat}
        s_cmp_gt_u32 s53, {SPIN}
        s_cbranch_scc1 {Ld}
        s_cbranch_vccz {Ld}
        s_sleep {nap or E('KF_SLEEP', 4)}
        s_branch {L}
        {Ld}:
        s_mov_b64 exec, -1
        ''')
    stamp(a, 0); stamp(a, 14, True)
    sSTR, sXO, sWO = 45, 46, 47
    a(f"""
    s_load_dwordx4 s[4:7], s[0:1], 0
    s_load_dwordx4 s[56:59], s[0:1], 32
    s_load_dwordx2 s[42:43], s[0:1], 64
    s_load_dwordx4 s[60:63], s[0:1], 48
    s_load_dwordx2 s[40:41], s[0:1], 16
    s_cmp_ge_u32 s2, 256
    s_cbranch_scc1 L_end
    s_getpc_b64 s[48:49]
    L_pc:
    v_lshrrev_b32 v1, 6, v0
    v_and_b32 v{LANE}, 63, v0
    s_sub_u32 s48, s48, L_pc-{name}
    s_subb_u32 s49, s49, 0
    v_readfirstlane_b32 s{sWV}, v1
    v_lshlrev_b32 v2, 7, v0
    v_min_u32 v2, L_end-{name}, v2
    global_load_dword v254, v2, s[48:49]
    s_and_b32 s{sXCD}, s2, 7
    s_lshr_b32 s{sJ}, s2, 3
    s_cmp_lt_u32 s{sJ}, 3
    s_cbranch_scc1 L_stats
    s_cmp_lt_u32 s{sJ}, 18
    s_cselect_b32 s44, 3, 18
    s_cselect_b32 s48, 15, 14
    s_cselect_b32 s49, 0, 15
    s_movk_i32 s{sSTR}, 3456
    s_cselect_b32 s{sSTR}, 3840, s{sSTR}
    s_and_b32 s50, s2, 3
    s_mul_i32 s48, s48, s50
    s_sub_u32 s44, s{sJ}, s44
    s_add_u32 s44, s44, s48
    s_lshr_b32 s{sCG}, s44, 2
    s_and_b32 s{sMB}, s44, 3
    s_and_b32 s48, s2, 4
    s_add_u32 s{sMB}, s{sMB}, s48
    s_lshl_b32 s{sWO}, s{sCG}, 8
    s_add_u32 s{sCG}, s{sCG}, s49
    v_lshrrev_b32 v2, 3, v{LANE}
    v_and_b32 v3, 7, v{LANE}
    v_lshrrev_b32 v4, 1, v2
    v_xor_b32 v4, v4, v3
    s_lshl_b32 s48, s{sMB}, 3
    s_add_u32 s48, s48, s{sWV}
    v_lshl_add_u32 v5, s48, 5, v2
    v_mul_u32_u24 v5, 1280, v5
    v_lshl_add_u32 v8, v4, 4, v5
    v_xor_b32 v4, 4, v4
    v_lshl_add_u32 v9, v4, 4, v5
    v_add_u32 v9, {10240-1024}, v9
    v_add_u32 v10, {2*(10240-1024)}, v8
    v_add_u32 v11, {2*(10240-1024)}, v9
    v_lshrrev_b32 v2, 4, v{LANE}            ; r
    v_and_b32 v3, 15, v{LANE}
    s_and_b32 s48, s{sWV}, 1
    s_lshl_b32 s48, s48, 3
    v_lshl_add_u32 v4, v2, 1, s48
    v_xor_b32 v6, v3, v4
    v_lshl_add_u32 v5, s{sWV}, 3, v2
    v_mul_u32_u24 v5, s{sSTR}, v5
    v_lshl_add_u32 v12, v6, 4, v5
    s_lshl_b32 s48, s{sSTR}, 2
    s_sub_u32 s48, s48, 1024
    v_add_u32 v13, s48, v12
    s_mov_b32 s{R0+2}, {S*D*2}
    s_mov_b32 s{R0+3}, 0x20000
    s_mul_i32 s{R1+2}, s{sSTR}, 640
    s_mov_b32 s{R1+3}, 0x20000
    s_lshl_b32 m0, s{sWV}, 12
    s_cmp_lt_u32 s{sJ}, 18
    s_waitcnt lgkmcnt(0)
    s_mov_b32 s{R0}, s{pX}
    s_mov_b32 s{R0+1}, s{pX+1}
    s_cselect_b32 s{R1}, s{pWQ}, s{pW1}
    s_cselect_b32 s{R1+1}, s{pWQ+1}, s{pW1+1}
    buffer_load_dwordx4 v8, {s(R0,4)}, 0 offen lds
    buffer_load_dwordx4 v9, {s(R0,4)}, 0 offen offset:1024 lds
    buffer_load_dwordx4 v10, {s(R0,4)}, 0 offen offset:2048 lds
    buffer_load_dwordx4 v11, {s(R0,4)}, 0 offen offset:3072 lds
    s_lshl_b32 s48, s{sWV}, 11
    s_add_u32 m0, s48, {XSZ}
    s_mul_i32 s{sTY}, s{sCG}, 52
    buffer_load_dwordx4 v12, {s(R1,4)}, s{sWO} offen lds
    buffer_load_dwordx4 v13, {s(R1,4)}, s{sWO} offen offset:1024 lds
    s_lshr_b32 s{sTY}, s{sTY}, 8
    s_min_u32 s{sTY}, s{sTY}, 3
    s_cmp_lt_u32 s{sWV}, 4
    s_cbranch_scc1 L_compute
    """)
    sHW, sWST, sLX, sLW = 44, 48, 49, 50
    vXo, vWo = 8, 16
    if HST == 2: stamp(a, 2)
    a(f"""
    s_setprio 1
    s_sub_u32 s{sHW}, s{sWV}, 4
    s_sub_u32 s{sT}, s{sHW}, 4
    s_mul_i32 s{sT}, s{sT}, {32*1280}
    v_add_u32 v11, s{sT}, v11
    v_add_u32 v10, s{sT}, v10
    v_add_u32 v9, s{sT}, v9
    v_add_u32 v8, s{sT}, v8
    v_lshlrev_b32 v4, 1, v2
    v_xor_b32 v4, v3, v4
    v_lshl_add_u32 v5, s{sHW}, 4, v2
    v_mul_u32_u24 v5, s{sSTR}, v5
    v_lshl_add_u32 v{vWo}, v4, 4, v5
    v_xor_b32 v4, 8, v4
    v_lshl_add_u32 v{vWo+2}, v4, 4, v5
    s_lshl_b32 s{sT}, s{sSTR}, 2
    s_sub_u32 s{sT}, s{sT}, 1024
    s_lshl_b32 s{sT2}, s{sT}, 1
    v_add_u32 v{vWo+1}, s{sT}, v{vWo}
    v_add_u32 v{vWo+2}, s{sT2}, v{vWo+2}
    v_add_u32 v{vWo+3}, s{sT}, v{vWo+2}
    s_lshl_b32 s{sWST}, s{sSTR}, 6
    s_movk_i32 s{sXO}, 128
    s_add_u32 s{sWO}, s{sWO}, s{sWST}
    s_lshl_b32 s{sLX}, s{sHW}, 13
    s_lshl_b32 s{sLW}, s{sHW}, 12
    s_add_u32 s{sLW}, s{sLW}, {XSZ}
    """)
    for i in range(4): a(f'v_add_u32 v{vXo+4+i}, {4*10240}, v{vXo+i}')
    adv = f's_add_u32 s{sXO}, s{sXO}, 128\ns_add_u32 s{sWO}, s{sWO}, s{sWST}'
    def dma(lx, lw, slot):
        xs = [f'buffer_load_dwordx4 v{vXo+i}, {s(R0,4)}, s{sXO} offen offset:{1024*(i&3)} lds' for i in range(8)]
        ws = [f'buffer_load_dwordx4 v{vWo+m}, {s(R1,4)}, s{sWO} offen offset:{1024*m} lds' for m in range(4)]
        m0 = lambda r, o: f's_add_u32 m0, s{r}, {o}\ns_nop 0\n'
        return [m0(lx, slot*SLOT)+xs[0]] + xs[1:4] + [m0(lw, slot*SLOT)+ws[0]] + ws[1:4] + [m0(lx, slot*SLOT+4096)+xs[4]] + xs[5:7] + [xs[7]+'\n'+adv]
    D1 = dma(sLX, sLW, 1)
    NP = E('KF_NP', 8)
    for x in D1[:NP]: a(x)
    if HST == 2: stamp(a, 5)
    sS1, sSL, sSN = 51, 52, 54
    a(f"""
    s_mov_b32 s{sS1}, 0
    s_mov_b32 s{sSL}, 0
    s_mov_b32 s{sSN}, {2*SLOT}
    s_cmp_eq_u32 s{sTY}, 2
    s_cselect_b32 s3, 2, 3
    v_lshlrev_b32 v97, s3, v{LANE}
    v_add_u32 v97, {L_ST}, v97
    s_cselect_b32 s3, {L_STB}, 4
    v_add_u32 v96, s3, v97
    v_lshlrev_b32 v98, 2, v{LANE}
    v_lshlrev_b32 v95, 3, v{LANE}
    v_add_u32 v92, {L_ST+L_CF}, v98
    v_and_b32 v94, 3, v{LANE}
    v_lshlrev_b32 v94, 6, v94
    """)
    srd(R3, pWS, WS_ST, WS_END-WS_ST); srd(R4, pDBG, 0, 256)
    a(f's_waitcnt vmcnt({NP})')
    stamp(a, 1)
    a('s_barrier\ns_setprio 0')
    if HST == 2: stamp(a, 6)
    for x in D1[NP:]: a(x)
    if HST == 2: stamp(a, 7)
    a(f"""
    L_hloop:
    s_add_u32 s3, s{sLX}, s{sSN}
    s_add_u32 s55, s{sLW}, s{sSN}
    """)
    for x in dma(3, 55, 0): a(x)
    a(f"""
    s_mov_b32 s{sSN}, s{sSL}
    s_add_u32 s{sSL}, s{sSL}, {SLOT}
    s_cmp_eq_u32 s{sSL}, {3*SLOT}
    s_cselect_b32 s{sSL}, 0, s{sSL}
    """)
    if HST == 2:
        a(f's_cmp_lg_u32 s{sS1}, 0\ns_cbranch_scc1 L_nost'); stamp(a, 8); a('s_waitcnt vmcnt(12)'); stamp(a, 9); a('L_nost:')
    a(f"""
    s_add_u32 s{sS1}, s{sS1}, 1
    s_cmp_eq_u32 s{sS1}, 8
    s_waitcnt vmcnt(12)
    s_cbranch_scc1 L_h8
    """)
    if HST == 1: stamp_loop(a, 2, 0, 7)
    a(f"""
    s_barrier
    s_branch L_hloop
    L_h8:
    """)
    if HST == 1: stamp(a, 9)
    def st_loads():
        a(f's_lshl_b32 s{sT}, s{sMB}, 11\ns_lshl_b32 s{sT2}, s{sCG}, 9\ns_add_u32 s{sT2}, s{sT2}, {WS_CP-WS_ST}')
        for n in range(4): a(f'buffer_load_dwordx2 {v(100+2*n,2)}, v95, {s(R3,4)}, s{sT} offen offset:{512*n} sc1')
        for p_ in range(3):
            for n in range(2): a(f'buffer_load_dword v{108+2*p_+n}, v98, {s(R3,4)}, s{sT2} offen offset:{256*n} sc1')
            if p_ < 2: a(f's_add_u32 s{sT2}, s{sT2}, {CPS}')
    def st_lds():
        a(f"""
        s_cmp_eq_u32 s{sTY}, 0
        s_cselect_b32 s3, {f2u(QSCALE)}, 1.0
        s_cmp_eq_u32 s{sTY}, 2
        s_cselect_b32 s{sT}, 256, 512
        v_mov_b32 v90, v97
        v_mov_b32 v91, v96
        s_waitcnt vmcnt(0)
        """.replace(f's_cselect_b32 s{sT}, 256, 512', f's_movk_i32 s{sT}, 512\ns_cselect_b32 s{sT}, 256, s{sT}'))
        for n in range(2): a(f'v_add_f32 v{108+n}, v{108+n}, v{110+n}')
        for n in range(4): a(f'v_mul_f32 v{100+2*n}, s3, v{100+2*n}')
        for n in range(2): a(f'v_add_f32 v{108+n}, v{108+n}, v{112+n}')
        for n in range(4):
            a(f'ds_write_b32 v90, v{100+2*n}\nds_write_b32 v91, v{101+2*n}')
            if n < 3: a(f'v_add_u32 v90, s{sT}, v90\nv_add_u32 v91, s{sT}, v91')
        a('ds_write2st64_b32 v92, v108, v109 offset0:0 offset1:1\ns_waitcnt lgkmcnt(0)')
    a(f"""
    s_barrier
    s_cmp_lg_u32 s{sHW}, 0
    s_cbranch_scc1 L_h_others
    buffer_load_dword v93, v94, {s(R4,4)}, 0 offen sc1
    s_waitcnt vmcnt(1)
    s_barrier
    s_waitcnt vmcnt(0)
    v_cmp_gt_u32 vcc, 6, v93
    s_setprio 2
    s_nop 3
    s_cbranch_vccnz L_h_late
    """)
    st_loads()
    a('s_barrier')
    st_lds()
    a('s_branch L_h_join\nL_h_late:\ns_barrier')
    poll('p0', 94, 93, R4, 6, 0xF)
    st_loads(); st_lds()
    a("""
    s_branch L_h_join
    L_h_others:
    s_waitcnt vmcnt(0)
    s_barrier
    s_barrier
    L_h_join:
    """)
    stamp(a, 11 if HST else 2)
    a('s_barrier\ns_setprio 0')
    if not HST: stamp(a, 3)
    a('L_b_phase2:')
    ACC, WF, HF = 0, 80, 120
    vW, vKVo, vH0, vH1, vWb, vHb, vWr, vHr0, vHr1 = 152, 157, 160, 161, 162, 163, 164, 165, 166
    TB = 168
    sV = sHW
    sTB, sC8, sW2O, sHO, sLB, sSD, sSR, sKVO, sKVS, sC = 45, 46, 47, 48, 49, 50, 51, 52, 54, 55
    sKVE, sLBE = 33, 34
    M1 = 0xFFFF | (0xFFFFF << 32) | (0xFF << 56)
    M2 = 0xFFF | (0xFFFFF << 16) | (0xFFFFF << 40)
    RKV, RW2, RH = R0, R1, R2
    a(f'''
    v_lshlrev_b32 v{vKVo}, 4, v{LANE}
    ''')
    for k in range(2):
        a(f'''
        v_add_u32 v{TB}, {64*k+16}, v{LANE}          ; w + 48
        v_mul_u32_u24 v{TB+1}, 2731, v{TB}
        v_lshrrev_b32 v{TB+1}, 16, v{TB+1}           ; g + 2
        v_mul_u32_u24 v{TB+2}, 24, v{TB+1}
        v_sub_u32 v{TB}, v{TB}, v{TB+2}              ; row
        v_lshrrev_b32 v{TB+2}, 2, v{TB}
        v_and_b32 v{TB}, 3, v{TB}
        v_lshlrev_b32 v{TB}, 4, v{TB}
        v_lshl_add_u32 v{TB}, v{TB+1}, 6, v{TB}
        v_lshl_add_u32 v{TB}, v{TB+2}, 8, v{TB}
        v_add_u32 v{vKVo+1+k}, {1280-128}, v{TB}
        ''')
    a(f'''
    v_cmp_gt_u32 vcc, 32, v{LANE}
    v_add_u32 v{TB+3}, 1024, v{vKVo}
    s_nop 0
    v_cndmask_b32 v{vKVo+1}, v{vKVo+1}, v{TB+3}, vcc
    s_lshr_b32 s{sT}, s{sJ}, 3
    s_lshl_b32 s{sT2}, s{sXCD}, 2
    s_add_u32 s{sT}, s{sT}, s{sT2}             ; head
    s_mul_i32 s3, s{sT}, 20
    s_mul_i32 s{sT}, s{sT}, {HSK}
    s_mul_i32 s{sKVO}, s{sV}, {KVREC}
    s_add_u32 s{sKVO}, s{sKVO}, s{sT}
    s_mul_i32 s{sKVS}, s{sV}, {TI}
    s_add_u32 s{sKVE}, s{sKVS}, {4*CH}
    s_lshr_b32 s{sTB}, s{sXCD}, 1
    s_lshl_b32 s{sTB}, s{sTB}, 3
    s_lshr_b32 s{sT}, s{sJ}, 2
    s_add_u32 s{sTB}, s{sTB}, s{sT}
    s_and_b32 s{sC8}, s{sXCD}, 1
    s_lshl_b32 s{sC8}, s{sC8}, 2
    s_and_b32 s{sT}, s{sJ}, 3
    s_add_u32 s{sC8}, s{sC8}, s{sT}
    s_mul_i32 s{sT2}, s{sV}, 14
    s_cmp_eq_u32 s{sV}, 3
    s_cselect_b32 s{sT2}, 41, s{sT2}
    s_mul_i32 s{sW2O}, s{sT2}, {32*1280}
    s_mul_i32 s{sT}, s{sC8}, 160
    s_add_u32 s{sW2O}, s{sW2O}, s{sT}
    s_mul_i32 s{sHO}, s{sTB}, {2*RECH}
    s_lshl_b32 s{sT}, s{sT2}, 11
    s_add_u32 s{sHO}, s{sHO}, s{sT}
    s_mul_i32 s{sLB}, s{sV}, {BW}
    s_add_u32 s{sLB}, s{sLB}, {L_B}
    s_mov_b32 s{sSD}, s{sLB}
    s_mov_b32 s{sSR}, 0
    s_add_u32 s{sLBE}, s{sLB}, {BW}
    v_lshlrev_b32 v{vH0}, 4, v{LANE}
    v_add_u32 v{vH1}, {RECH}, v{vH0}
    ''')
    srd(RKV, pWS, WS_KV, WS_KV_SZ); srd(RW2, pW2, 0, FF*D*2); srd(RH, pWS, WS_H, WS_H_SZ)
    for m in range(5):
        a(f'''
        v_add_u32 v{TB}, {64*m}, v{LANE}
        v_mul_u32_u24 v{TB+1}, 6554, v{TB}
        v_lshrrev_b32 v{TB+1}, 16, v{TB+1}
        v_mul_u32_u24 v{TB+2}, 10, v{TB+1}
        v_sub_u32 v{TB}, v{TB}, v{TB+2}
        v_mul_u32_u24 v{TB+1}, 1280, v{TB+1}
        v_lshl_add_u32 v{vW+m}, v{TB}, 4, v{TB+1}
        ''')
    a(f'''
    v_and_b32 v{TB}, 15, v{LANE}              ; tau
    v_lshrrev_b32 v{TB+1}, 4, v{LANE}         ; g
    v_lshrrev_b32 v{TB+2}, 2, v{LANE}         ; 4g + r
    v_mul_u32_u24 v{TB+2}, 160, v{TB+2}
    v_and_b32 v{TB+3}, 3, v{LANE}
    v_lshl_add_u32 v{TB+2}, v{TB+3}, 3, v{TB+2}
    v_add_u32 v{vWb}, s{sLB}, v{TB+2}
    v_lshlrev_b32 v{TB+2}, 8, v{TB+1}
    v_lshl_add_u32 v{TB+2}, v{TB}, 3, v{TB+2}
    v_add_u32 v{TB+2}, 5120, v{TB+2}
    v_add_u32 v{vHb}, s{sLB}, v{TB+2}
    v_bfe_u32 v{TB+4}, v{LANE}, 3, 1
    v_mul_u32_u24 v{TB+4}, 19, v{TB+4}
    v_add_u32 v{TB+4}, s3, v{TB+4}
    v_lshrrev_b32 v{TB+4}, 7, v{TB+4}
    v_mul_u32_u24 v{TB+5}, 5, v{TB+1}
    v_add_u32 v{TB+4}, v{TB+4}, v{TB+5}
    v_and_b32 v{TB+5}, 7, v{LANE}
    v_lshl_add_u32 v{TB+4}, v{TB+4}, 3, v{TB+5}
    v_lshlrev_b32 v{TB+4}, {FSH}, v{TB+4}
    v_add_u32 v{TB+4}, {WS_F1-WS_ST}, v{TB+4}
    s_lshr_b32 s{sT}, s{sTB}, 2
    s_lshl_b32 s{sT}, s{sT}, {FSH}
    s_add_u32 s{sT}, s{sT}, {WS_F1-WS_ST+(15*8 << FSH)}
    v_lshl_add_u32 v{TB+5}, v{LANE}, {3+FSH}, s{sT}
    ''')
    for i in range(80): a(f'v_mov_b32 v{ACC+i}, 0')
    def wparts(slot_off):
        return [f's_add_u32 m0, {slot_off}, {1024*m}\ns_nop 0\nbuffer_load_dwordx4 v{vW+m}, {s(RW2,4)}, s{sW2O} offen lds' for m in range(5)]
    def hparts(slot_off):
        L = []
        for i in range(4):
            pre = f's_add_u32 m0, {slot_off}, {5120+2048*(i>>1)}\ns_nop 0\n' if i % 2 == 0 else ''
            L.append(pre + f'buffer_load_dwordx4 v{vH1 if i>>1 else vH0}, {s(RH,4)}, s{sHO} offen offset:{1024*(i&1)} lds')
        L[-1] += f'\ns_add_u32 s{sHO}, s{sHO}, 2048'
        return L
    for k in range(3):
        a(f's_add_u32 s3, s{sLB}, {k*BSL}')
        for x in wparts('s3'): a(x)
        a(f's_add_u32 s{sW2O}, s{sW2O}, {32*1280}')
    def kvdma():
        a(f'''
        s_mov_b32 m0, s{sKVS}
        s_add_u32 s{sKVS}, s{sKVS}, {CH}
        buffer_load_dwordx4 v{vKVo}, {s(RKV,4)}, s{sKVO} offen lds
        s_add_u32 m0, m0, 1024
        s_mov_b32 exec_lo, {M1 & 0xffffffff}
        s_mov_b32 exec_hi, {M1 >> 32}
        buffer_load_dwordx4 v{vKVo+1}, {s(RKV,4)}, s{sKVO} offen lds
        s_add_u32 m0, m0, 1024
        s_mov_b32 exec_lo, {M2 & 0xffffffff}
        s_mov_b32 exec_hi, {M2 >> 32}
        buffer_load_dwordx4 v{vKVo+2}, {s(RKV,4)}, s{sKVO} offen lds
        s_mov_b64 exec, -1
        s_add_u32 s{sKVO}, s{sKVO}, {4*KVREC}
        s_cmp_eq_u32 s{sKVS}, s{sKVE}
        s_cselect_b32 s{sT}, {4*CH}, 0
        s_sub_u32 s{sKVS}, s{sKVS}, s{sT}
        ''')
    MQ = (1 << 48) - 1
    if not HST: stamp(a, 4)
    a('s_barrier')
    if STOP == 1: a('s_branch L_fin')
    a(f's_setprio 1\ns_cmp_lg_u32 s{sV}, 0\ns_cbranch_scc1 L_b_p2')
    poll('kv', TB+4, TB+6, R3, 1, MQ)
    a('L_b_p2:\ns_barrier')
    stamp(a, 5)
    kvdma(); kvdma()
    a('s_waitcnt vmcnt(3)\ns_setprio 0')
    stamp(a, 6)
    a('s_barrier')
    kvdma()
    a(f's_cmp_lg_u32 s{sV}, 0\ns_cbranch_scc1 L_b_ph')
    poll('h', TB+5, TB+6, R3, 1, 0x3FFF)
    a('L_b_ph:\ns_waitcnt vmcnt(3)\ns_barrier')
    for x in hparts(f's{sLB}'): a(x)
    kvdma()
    for k in (1, 2):
        a(f's_add_u32 s3, s{sLB}, {k*BSL}')
        for x in hparts('s3'): a(x)
    def dmas(last=False):
        L = wparts(f's{sSD}')
        if last: L[-1] += f'\ns_cmp_ge_u32 s{sV}, 2\ns_cselect_b32 s{sHO}, 0x40000000, s{sHO}'
        L += hparts(f's{sSD}')
        L[-1] += f'''
        s_add_u32 s{sW2O}, s{sW2O}, {32*1280}
        s_add_u32 s{sSD}, s{sSD}, {BSL}
        s_cmp_eq_u32 s{sSD}, s{sLBE}
        s_cselect_b32 s{sSD}, s{sLB}, s{sSD}'''
        return L
    def reads(buf):
        L = [f'ds_read2st64_b64 {v(HF+16*buf+4*i,4)}, v{vHr1 if i & 1 else vHr0} offset0:{4*(i>>1)} offset1:{4*(i>>1)+2}' for i in range(4)]
        for ct in range(5):
            for e_ in range(2):
                L.append(f'ds_read_b64_tr_b16 {v(WF+20*buf+4*ct+2*e_,2)}, v{vWr} offset:{e_*2560+ct*32}')
        L[0] = f'''v_add_u32 v{vHr0}, s{sSR}, v{vHb}
        v_add_u32 v{vWr}, s{sSR}, v{vWb}
        s_add_u32 s{sSR}, s{sSR}, {BSL}
        v_add_u32 v{vHr1}, 128, v{vHr0}
        s_cmp_eq_u32 s{sSR}, {BW}
        s_cselect_b32 s{sSR}, 0, s{sSR}
        ''' + L[0]
        return L
    def mfmas(buf):
        return [f'v_mfma_f32_16x16x32_bf16 {v(ACC+4*(5*tb+ct),4)}, {v(WF+20*buf+4*ct,4)}, {v(HF+16*buf+4*tb,4)}, {v(ACC+4*(5*tb+ct),4)}' for ct in range(5) for tb in range(4)]
    a('s_waitcnt vmcnt(11)')
    for x in reads(0): a(x)
    def interval(buf, kv, rd, Dm, w0, bar=True):
        a('s_waitcnt lgkmcnt(0)\ns_barrier' if bar else 's_waitcnt lgkmcnt(0)')
        if kv: kvdma()
        if rd: a(f's_waitcnt vmcnt({w0})')
        R = reads(1-buf) if rd else []
        oth = []
        while R or Dm:
            if R: oth.append(R.pop(0))
            if R: oth.append(R.pop(0))
            if Dm: oth.append(Dm.pop(0))
        M = mfmas(buf)
        for i, m in enumerate(M):
            a(m)
            if oth: a(oth.pop(0))
            if len(oth) > len(M)-1-i: a(oth.pop(0))
        for x in oth: a(x)
    interval(0, True, True, dmas(), 7)
    a(f's_mov_b32 s{sC}, 0\nL_bloop:')
    interval(1, True, True, dmas(), 12); interval(0, True, True, dmas(), 12)
    a(f's_add_u32 s{sC}, s{sC}, 1\ns_cmp_lt_u32 s{sC}, 4\ns_cbranch_scc1 L_bloop')
    interval(1, True, True, dmas(), 12)
    interval(0, True, True, dmas(True), 12)
    interval(1, True, True, [], 12)
    interval(0, False, True, [], 0)
    srd(RW2, pWO, 0, D*D*2)
    a(f'''
    s_mul_i32 s{sW2O}, s{sV}, {160*1280}
    s_mul_i32 s{sT}, s{sC8}, 160
    s_add_u32 s{sW2O}, s{sW2O}, s{sT}
    s_mov_b32 s{sSD}, s{sLB}
    ''')
    def wo_group():
        L = wparts(f's{sSD}')
        L[-1] += f'\ns_add_u32 s{sW2O}, s{sW2O}, {32*1280}\ns_add_u32 s{sSD}, s{sSD}, 5120'
        return L
    interval(1, False, False, wo_group()+wo_group()+wo_group(), 0)
    a('s_barrier')
    for x in wo_group()+wo_group(): a(x)
    OF = 120; vA, vP, vOm, vOp = 200, 201, 202, 203
    RO = R2
    srd(RO, pWS, WS_O, WS_O_SZ)
    a(f'''
    v_and_b32 v{TB}, 15, v{LANE}             ; tau
    v_lshrrev_b32 v{TB+1}, 4, v{LANE}        ; g
    v_lshrrev_b32 v{TB+2}, 1, v{TB+1}
    v_and_b32 v{TB+3}, 1, v{TB+1}
    v_mul_u32_u24 v{TB+4}, 1280, v{TB+2}
    v_lshl_add_u32 v{TB+4}, v{TB+3}, 9, v{TB+4}
    v_lshl_add_u32 v{vOm}, v{TB}, 4, v{TB+4}
    v_mul_u32_u24 v{TB+4}, 2560, v{TB+1}
    v_lshl_add_u32 v{vOp}, v{TB}, 3, v{TB+4}
    v_mul_u32_u24 v{TB+2}, 20, v{TB+2}
    v_lshl_add_u32 v{TB+2}, v{TB+3}, 2, v{TB+2}
    v_lshrrev_b32 v{TB+4}, 2, v{TB}              ; r
    v_add_u32 v{TB+2}, v{TB+2}, v{TB+4}
    v_mul_u32_u24 v{TB+2}, 160, v{TB+2}
    v_and_b32 v{TB+5}, 3, v{TB}
    v_lshl_add_u32 v{TB+5}, v{TB+5}, 3, s{sLB}
    v_add_u32 v{vA}, v{TB+2}, v{TB+5}
    v_mul_u32_u24 v{TB+2}, 40, v{TB+1}
    v_add3_u32 v{TB+2}, v{TB+2}, v{TB+4}, 16
    v_mul_u32_u24 v{TB+2}, 160, v{TB+2}
    v_add_u32 v{vP}, v{TB+2}, v{TB+5}
    v_mul_u32_u24 v{TB}, {RS}, v{TB}
    v_lshl_add_u32 v{TB}, v{TB+1}, 4, v{TB}
    v_add_u32 v{204}, s{sLB}, v{TB}
    s_lshr_b32 s{sT}, s{sTB}, 2
    s_lshl_b32 s{sT}, s{sT}, {5+FSH}
    s_add_u32 s{sT}, s{sT}, {WS_F2-WS_ST}
    v_lshl_add_u32 v{TB+6}, v{LANE}, {FSH}, s{sT}
    s_mul_i32 s{sHO}, s{sTB}, {2*RECO}
    s_mul_i32 s{sT}, s{sV}, {8*1280}
    s_add_u32 s{sHO}, s{sHO}, s{sT}
    s_setprio 1
    s_waitcnt vmcnt(0)
    ''')
    def wreads(u):
        L = []
        for ct in range(5):
            for e in range(2):
                if u < 4: L.append(f'ds_read_b64_tr_b16 {v(WF+20*(u&1)+4*ct+2*e,2)}, v{vA} offset:{(40*u+8*e)*160+32*ct}')
                else: L.append(f'ds_read_b64_tr_b16 {v(WF+20*(u&1)+4*ct+2*e,2)}, v{vP} offset:{20*e*160+32*ct}')
        return L
    for x in wreads(0): a(x)
    stamp(a, 7)
    if STOP == 2: a('s_branch L_fin')
    a(f's_cmp_lg_u32 s{sV}, 0\ns_cbranch_scc1 L_b_po')
    poll('o', TB+6, TB+7, R3, 1, 0xFFFFFFFF)
    a('L_b_po:\ns_barrier')
    stamp(a, 8)
    for u in range(4):
        for T_ in range(2):
            a(f's_add_u32 s3, s{sHO}, {u*2560+T_*RECO}')
            for b in range(2):
                a(f'buffer_load_dwordx4 {v(OF+16*u+8*T_+4*b,4)}, v{vOm}, {s(RO,4)}, s3 offen offset:{256*b}')
    for T_ in range(2):
        a(f's_add_u32 s3, s{sHO}, {1024+T_*RECO}')
        for b in range(2):
            for e in range(2):
                a(f'buffer_load_dwordx2 {v(OF+64+8*T_+4*b+2*e,2)}, v{vOp}, {s(RO,4)}, s3 offen offset:{128*b+1280*e}')
    for u in range(5):
        a(f's_waitcnt vmcnt({20-4*u if u < 4 else 0}) lgkmcnt(0)')
        if u == 0: stamp(a, 9)
        M = [f'v_mfma_f32_16x16x32_bf16 {v(ACC+4*(5*tb+ct),4)}, {v(WF+20*(u&1)+4*ct,4)}, {v(OF+16*u+4*tb,4)}, {v(ACC+4*(5*tb+ct),4)}' for tb in range(4) for ct in range(5)]
        for x in interleave(M, wreads(u+1) if u < 4 else [], 0, 1): a(x)
    stamp(a, 10)
    for tb in range(4):
        for ct in range(5):
            if tb == 3 and ct == 0: a('s_nop 0')
            a(f'ds_write_b128 v204, {v(ACC+4*(5*tb+ct),4)} offset:{tb*16*RS+ct*64}')
    a('s_waitcnt lgkmcnt(0)\ns_barrier\ns_branch L_fin')
    ACC = 0; XF = 128; WF = 192
    vA_ = list(range(224, 230)); vB_ = list(range(230, 236))
    VO, vSA, vCA = 236, 240, 241
    sTH, sCH, sHS, sREC, sT0, sSLOT, sS = 44, 45, 46, 54, 55, 51, 52
    HP = 168
    RO1 = R0
    a('L_compute:')
    if MPF:
        a(f"""
        s_mul_i32 s44, s{sXCD}, 29
        s_add_u32 s44, s44, s{sJ}
        s_sub_u32 s44, s44, 3
        s_cmp_eq_u32 s{sWV}, 1
        s_cselect_b32 s{R2}, s{pWQ}, s{pX}
        s_cselect_b32 s{R2+1}, s{pWQ+1}, s{pX+1}
        s_movk_i32 s45, 89
        s_cselect_b32 s45, 83, s45
        s_mov_b32 s{R2+2}, {S*D*2}
        s_cselect_b32 s{R2+2}, {D*3*D*2}, s{R2+2}
        s_cmp_eq_u32 s{sWV}, 2
        s_cselect_b32 s{R2}, s{pW1}, s{R2}
        s_cselect_b32 s{R2+1}, s{pW1+1}, s{R2+1}
        s_cmp_eq_u32 s{sWV}, 3
        s_cselect_b32 s{R2}, s{pW2}, s{R2}
        s_cselect_b32 s{R2+1}, s{pW2+1}, s{R2+1}
        s_cmp_ge_u32 s{sWV}, 2
        s_cselect_b32 s45, 75, s45
        s_cselect_b32 s{R2+2}, {D*FF*2}, s{R2+2}
        s_cmp_ge_u32 s{sWV}, {MPF}
        s_cselect_b32 s{R2+2}, 0, s{R2+2}
        s_mov_b32 s{R2+3}, 0x20000
        s_mul_i32 s44, s44, s45
        s_lshl_b32 s44, s44, 7
        s_sub_u32 s45, s45, 65
        v_lshlrev_b32 v2, 7, v{LANE}
        v_min_u32 v3, s45, v{LANE}
        v_lshlrev_b32 v3, 7, v3
        v_add_u32 v3, 8192, v3
        buffer_load_dword v253, v2, {s(R2,4)}, s44 offen
        buffer_load_dword v252, v3, {s(R2,4)}, s44 offen
        """)
    a(f"""
    s_and_b32 s{sTH}, s{sWV}, 1
    s_lshr_b32 s{sCH}, s{sWV}, 1
    v_and_b32 v2, 15, v{LANE}               ; tau / (4r+c)
    v_lshrrev_b32 v3, 4, v{LANE}            ; g
    s_lshl_b32 s{sT}, s{sTH}, 14
    v_lshrrev_b32 v4, 1, v2
    v_xor_b32 v4, v4, v3
    v_lshl_add_u32 v5, v2, 7, s{sT}
    v_lshl_add_u32 v{vB_[0]}, v4, 4, v5
    v_xor_b32 v4, 4, v4
    v_lshl_add_u32 v{vB_[1]}, v4, 4, v5
    v_lshrrev_b32 v4, 2, v2                 ; r
    v_lshl_add_u32 v5, v3, 3, v4            ; 8g + r
    v_lshlrev_b32 v5, 8, v5
    v_and_b32 v6, 1, v2
    v_lshl_add_u32 v5, v6, 3, v5
    v_and_b32 v6, 1, v3
    v_lshlrev_b32 v6, 3, v6
    v_lshl_add_u32 v6, v4, 1, v6            ; swizzle
    v_bfe_u32 v7, v2, 1, 1
    v_lshl_add_u32 v7, s{sCH}, 3, v7
    v_xor_b32 v6, v6, v7
    """)
    for ct in range(4):
        a(f'v_xor_b32 v7, {2*ct}, v6\nv_lshl_add_u32 v{vB_[2+ct]}, v7, 4, v5')
    for d_, s_ in zip(vA_, vB_): a(f'v_mov_b32 v{d_}, v{s_}')
    a(f"""
    s_lshl_b32 s{sT0}, s{sMB}, 3
    s_lshl_b32 s{sT}, s{sTH}, 2
    s_add_u32 s{sT0}, s{sT0}, s{sT}
    s_mul_i32 s{sT}, s{sTY}, 5
    s_sub_u32 s{sT}, s{sCG}, s{sT}
    s_lshl_b32 s{sT}, s{sT}, 1
    s_add_u32 s{sT}, s{sT}, s{sCH}
    s_lshl_b32 s50, s{sT}, 4
    s_cmp_eq_u32 s{sTY}, 3
    s_mov_b32 s{sHS}, {HSK}
    s_movk_i32 s{sREC}, {KVREC}
    s_mov_b32 s47, {WS_KV}
    s_mov_b32 s{RO1+2}, {WS_KV_SZ}
    s_cselect_b32 s{sHS}, 1280, s{sHS}
    s_cselect_b32 s{sREC}, {RECH}, s{sREC}
    s_cselect_b32 s47, {WS_H}, s47
    s_cselect_b32 s{RO1+2}, {WS_H_SZ}, s{RO1+2}
    s_cmp_eq_u32 s{sTY}, 0
    s_cselect_b32 s{sHS}, {HSQ}, s{sHS}
    s_cselect_b32 s{sREC}, 1280, s{sREC}
    s_cselect_b32 s47, {WS_Q}, s47
    s_cselect_b32 s{RO1+2}, {WS_Q_SZ}, s{RO1+2}
    s_cmp_ge_u32 s50, 432
    s_cselect_b32 s{RO1+2}, 0, s{RO1+2}
    s_add_u32 s{RO1}, s{pWS}, s47
    s_addc_u32 s{RO1+1}, s{pWS+1}, 0
    s_mul_i32 s{sT0}, s{sT0}, s{sREC}
    s_mov_b32 s{sSLOT}, 0
    s_mov_b32 s{sS}, 0
    s_lshl_b32 s{sT}, s{sCH}, 8
    s_add_u32 s{sT}, s{sT}, {L_ST+L_CF}
    s_cmp_eq_u32 s{sTY}, 2
    s_cselect_b64 vcc, -1, 0
    s_cselect_b32 s{sT2}, 9, 10
    s_lshl_b32 s{sT2}, s{sTH}, s{sT2}
    s_add_u32 s{sT2}, s{sT2}, {L_ST}
    v_lshlrev_b32 v4, 3, v2
    v_lshlrev_b32 v5, 4, v3
    v_lshlrev_b32 v6, 2, v2
    v_cndmask_b32 v4, v4, v5, vcc
    v_cndmask_b32 v6, v5, v6, vcc
    v_add_u32 v{vSA}, s{sT2}, v4
    v_add_u32 v{vCA}, s{sT}, v6
    v_lshrrev_b32 v4, 2, v2
    v_cndmask_b32 v8, v3, v4, vcc
    v_add_u32 v8, s50, v8
    v_and_b32 v4, 3, v2
    v_lshlrev_b32 v4, 4, v4
    v_lshl_add_u32 v4, v3, 6, v4
    v_add_u32 v4, 1280, v4
    v_lshlrev_b32 v5, 4, v2
    v_cndmask_b32 v7, v5, v4, vcc
    """)
    for ct in range(4):
        a(f"""
        v_add_u32 v4, {4*ct}, v8
        v_mul_u32_u24 v5, 205, v4
        v_lshrrev_b32 v5, 10, v5
        v_mul_u32_u24 v6, 5, v5
        v_sub_u32 v4, v4, v6
        v_mul_lo_u32 v5, v5, s{sHS}
        v_add_u32 v5, v5, v7
        v_lshl_add_u32 v{VO+ct}, v4, 8, v5
        """)
    for i in range(128): a(f'v_mov_b32 v{ACC+i}, 0')
    a(f's_setprio 1\ns_waitcnt vmcnt({2 if MPF else 0})')
    def creads(ss, buf):
        xs = [f'ds_read_b128 {v(XF+32*buf+4*tt,4)}, v{vA_[ss]} offset:{tt*2048}' for tt in range(8)]
        ws = []
        for ct in range(4):
            for e in range(2):
                ws.append(f'ds_read_b64_tr_b16 {v(WF+16*buf+4*ct+2*e,2)}, v{vA_[2+ct]} offset:{XSZ+(32*ss+4*e)*256}')
        return ws[0:2] + xs + ws[2:]
    def cmfmas(buf, vori):
        m = []
        for ct in range(4):
            for tt in range(8):
                d = v(ACC+4*(tt*4+ct),4); w = v(WF+16*buf+4*ct,4); x = v(XF+32*buf+4*tt,4)
                m.append(f'v_mfma_f32_16x16x32_bf16 {d}, {x}, {w}, {d}' if vori else f'v_mfma_f32_16x16x32_bf16 {d}, {w}, {x}, {d}')
        return m
    stamp(a, 1)
    a('s_barrier')
    stamp(a, 2)
    for r in creads(0,0): a(r)
    a(f's_cmp_eq_u32 s{sTY}, 2\ns_waitcnt lgkmcnt(0)\ns_cbranch_scc1 L_loopV')
    for vori in (False, True):
        L = 'L_loopV' if vori else 'L_loopN'
        a(f'.p2align 5\n{L}:')
        cnt = 0
        for ins in interleave(cmfmas(0,vori), creads(1,1), 0, 1):
            a(ins)
            if ins.startswith('v_mfma'):
                cnt += 1
                if cnt == 18: a(f's_add_u32 s{sSLOT}, s{sSLOT}, {SLOT}')
                if cnt == 19: a(f's_cmp_eq_u32 s{sSLOT}, {3*SLOT}')
                if cnt == 20: a(f's_cselect_b32 s{sSLOT}, 0, s{sSLOT}')
                if cnt == 23: a('s_waitcnt lgkmcnt(0)')
                if cnt == 24: a('s_barrier')
                if 25 <= cnt <= 30:
                    k = [2, 0, 3, 4, 5, 1][cnt-25]
                    a(f'v_add_u32 v{vA_[k]}, s{sSLOT}, v{vB_[k]}')
        cnt = 0
        for ins in interleave(cmfmas(1,vori), creads(0,0), 0, 1):
            a(ins)
            if ins.startswith('v_mfma'):
                cnt += 1
                if cnt == 27: a(f's_add_u32 s{sS}, s{sS}, 1')
                if cnt == 28: a(f's_cmp_lt_u32 s{sS}, 10')
                if cnt == 30: a('s_waitcnt lgkmcnt(0)')
        a(f's_cbranch_scc1 {L}')
        stamp(a, 3)
        if vori: a('s_branch L_epiV')
        else: a(f's_cmp_eq_u32 s{sTY}, 3\ns_cbranch_scc1 L_epiH\ns_branch L_epiN')
    ST, CC, OUT = 128, 144, 212
    for relu in (False, True):
        a('L_epiH:' if relu else 'L_epiN:')
        a('s_barrier')
        if STOP == 1: stamp(a, 6)
        for tt in range(2): a(f'ds_read_b64 {v(ST+2*tt,2)}, v{vSA} offset:{L_STI+tt*128}')
        for ct in range(4): a(f'ds_read_b128 {v(CC+4*ct,4)}, v{vCA} offset:{ct*64}')
        for tt in range(2, 8): a(f'ds_read_b64 {v(ST+2*tt,2)}, v{vSA} offset:{L_STI+tt*128}')
        for tp in range(4):
            for ct in range(4):
                if tp == 0: a(f's_waitcnt lgkmcnt({9-ct})')
                if tp == 1 and ct == 0: a('s_waitcnt lgkmcnt(0)')
                o = OUT + 4*((tp*4+ct) % 4)
                ops = [[], [], [], []]
                for b in range(2):
                    tt = 2*tp+b; ac = ACC+4*(tt*4+ct)
                    for h in range(2):
                        ops[0].append(f'v_pk_fma_f32 {v(ac+2*h,2)}, {v(CC+4*ct+2*h,2)}, {v(ST+2*tt,2)}, {v(ac+2*h,2)} op_sel:[0,1,0] op_sel_hi:[1,1,1]')
                        ops[1].append(f'v_pk_mul_f32 {v(ac+2*h,2)}, {v(ac+2*h,2)}, {v(ST+2*tt,2)} op_sel:[0,0] op_sel_hi:[1,0]')
                        ops[2].append(f'v_cvt_pk_bf16_f32 v{o+2*b+h}, v{ac+2*h}, v{ac+2*h+1}')
                        if relu: ops[3].append(f'v_pk_max_i16 v{o+2*b+h}, v{o+2*b+h}, 0')
                for x in sum(ops, []): a(x)
                a(f'buffer_store_dwordx4 {v(o,4)}, v{VO+ct}, {s(RO1,4)}, s{sT0} offen {SC}')
            if tp < 3: a(f's_add_u32 s{sT0}, s{sT0}, s{sREC}')
        a('s_branch L_epi_done')
    SA, SB, CV = 128, 160, 192
    a('L_epiV:\ns_barrier')
    if STOP == 1: stamp(a, 6)
    for ct in range(4): a(f'ds_read_b32 v{CV+ct}, v{vCA} offset:{ct*64}')
    for tt in range(8):
        a(f'ds_read_b128 {v(SA+4*tt,4)}, v{vSA} offset:{L_STA+tt*64}')
        a(f'ds_read_b128 {v(SB+4*tt,4)}, v{vSA} offset:{L_STB+tt*64}')
    for tp in range(4):
        a(f's_waitcnt lgkmcnt({12-4*tp})')
        for ct in range(4):
            o = OUT + 4*((tp*4+ct) % 4)
            cp = CV + (ct & ~1); hi = ct & 1
            ops = [[], [], []]
            for b in range(2):
                tt = 2*tp+b; ac = ACC+4*(tt*4+ct)
                for h in range(2):
                    ops[0].append(f'v_pk_fma_f32 {v(ac+2*h,2)}, {v(SB+4*tt+2*h,2)}, {v(cp,2)}, {v(ac+2*h,2)} op_sel:[0,{hi},0] op_sel_hi:[1,{hi},1]')
                    ops[1].append(f'v_pk_mul_f32 {v(ac+2*h,2)}, {v(ac+2*h,2)}, {v(SA+4*tt+2*h,2)}')
                    ops[2].append(f'v_cvt_pk_bf16_f32 v{o+2*b+h}, v{ac+2*h}, v{ac+2*h+1}')
            for x in sum(ops, []): a(x)
            a(f'buffer_store_dwordx4 {v(o,4)}, v{VO+ct}, {s(RO1,4)}, s{sT0} offen {SC}')
        if tp < 3: a(f's_add_u32 s{sT0}, s{sT0}, s{sREC}')
    a('L_epi_done:\ns_setprio 1')
    stamp(a, 4)
    Sr = lambda q, par: 32*q + 16*par
    Or = lambda q: 64 + 16*q
    Pr = lambda q: 96 + 8*q
    Q1 = lambda q: 112 + 6*q
    Q2 = lambda q: 116 + 6*q
    KM, V0, V1 = 124, 128, 132
    KP = lambda t: 136 + 2*(t % 4)
    vK, vV = 144, 145
    T0 = 146
    sHEAD, sTQ, sSEC, sTG, sC, sHB = 44, 45, 46, 47, 48, 49
    RQ, RKV, RO, RF = R1, R2, R3, R4
    srd(RF, pWS, WS_ST, WS_END-WS_ST); srd(RQ, pWS, WS_Q, WS_Q_SZ); srd(RKV, pWS, WS_KV, WS_KV_SZ); srd(RO, pWS, WS_O, WS_O_SZ)
    a(f'''
    s_lshr_b32 s{sT}, s{sJ}, 3
    s_lshl_b32 s{sHEAD}, s{sXCD}, 2
    s_add_u32 s{sHEAD}, s{sHEAD}, s{sT}
    s_mul_i32 s{sHB}, s{sHEAD}, {HSK}
    s_and_b32 s{sTQ}, s{sJ}, 7
    s_lshl_b32 s{sTQ}, s{sTQ}, 3
    s_lshl_b32 s{sT}, s{sWV}, 1
    s_add_u32 s{sTQ}, s{sTQ}, s{sT}
    v_and_b32 v{T0}, 31, v{LANE}            ; rho / n
    v_lshrrev_b32 v{T0+1}, 5, v{LANE}       ; h
    v_subrev_u32 v{T0+2}, 16, v{T0}
    v_lshrrev_b32 v{T0+3}, 2, v{T0+2}
    v_mul_u32_u24 v{T0+3}, 20, v{T0+3}
    v_add3_u32 v{T0+3}, v{T0+3}, v{T0+2}, 36
    v_cmp_gt_u32 vcc, 16, v{T0}
    v_and_b32 v{T0+4}, 3, v{T0}
    v_cmp_eq_u32 s[50:51], 0, v{T0+4}
    v_cndmask_b32 v{T0+3}, v{T0+3}, v{T0}, vcc
    v_add_u32 v{T0+3}, 80, v{T0+3}
    v_mul_u32_u24 v{T0+4}, {TI//16}, v{T0+1}
    v_add_u32 v{T0+3}, v{T0+3}, v{T0+4}
    s_mul_i32 s{sT}, s{sWV}, {CH}
    v_lshl_add_u32 v{T0+3}, v{T0+3}, 4, s{sT}
    v_mov_b32 v{T0+4}, {ONE}
    v_mov_b32 v{T0+5}, 0x3f80
    v_cndmask_b32 v{T0+7}, 0, v{T0+4}, s[50:51]
    v_cndmask_b32 v{T0+6}, v{T0+7}, v{T0+4}, vcc
    v_cndmask_b32 v{T0+7}, v{T0+7}, v{T0+5}, vcc
    v_mov_b32 v{T0+8}, v{T0+6}
    v_mov_b32 v{T0+9}, v{T0+7}
    ds_write_b128 v{T0+3}, {v(T0+6,4)}
    ds_write_b128 v{T0+3}, {v(T0+6,4)} offset:{2*TI}
    v_mov_b32 v{T0+3}, {L_CNT}
    v_mov_b32 v{T0+2}, 0
    ds_write_b32 v{T0+3}, v{T0+2}
    s_mov_b32 s{sSEC}, 0
    v_and_b32 v{T0+2}, 7, v{T0}
    v_lshlrev_b32 v{T0+2}, 1, v{T0+2}
    v_and_b32 v{T0+3}, 16, v{T0}
    v_bfe_u32 v{T0+4}, v{T0}, 3, 1
    v_add3_u32 v{T0+2}, v{T0+2}, v{T0+3}, v{T0+4}
    v_lshlrev_b32 v{T0+2}, 3, v{T0+2}
    v_lshl_add_u32 v{vK}, v{T0+1}, 8, v{T0+2}
    v_min_u32 v{T0+4}, 21, v{T0}
    v_mul_u32_u24 v{T0+3}, 384, v{T0+1}
    v_lshl_add_u32 v{T0+3}, v{T0+4}, 4, v{T0+3}
    v_add_u32 v{vV}, 1536, v{T0+3}
    v_lshlrev_b32 v{T0+10}, 3, v{LANE}               ; h*256 + n*8
    v_lshlrev_b32 v{T0+2}, 3, v{T0}
    v_lshl_add_u32 v{T0+11}, v{T0+1}, 30, v{T0+2}
    s_lshl_b32 s{sT}, s{sCG}, 3
    s_add_u32 s{sT}, s{sT}, s{sMB}
    s_lshl_b32 s{sT}, s{sT}, {FSH}
    s_add_u32 s{sT}, s{sT}, {WS_F1-WS_ST}
    v_mov_b32 v{T0+13}, s{sT}
    v_mov_b32 v{T0+14}, 1
    ''')
    for i in range(32): a(f'v_mov_b32 v{Or(0)+i}, 0')
    for i in range(4): a(f'v_mov_b32 v{V1+i}, 0')
    a(f'''
    v_mov_b32 v{Pr(1)+4}, 0
    v_mov_b32 v{Pr(1)+5}, 0
    s_mov_b32 s51, 0xffff
    s_mov_b32 s{sC}, 0
    s_mov_b32 s{sTG}, {2*CH}
    s_mul_i32 s{sT}, s{sHEAD}, {HSQ}
    s_mul_i32 s{sT2}, s{sTQ}, 1280
    s_add_u32 s{sT2}, s{sT2}, s{sT}
    s_waitcnt vmcnt(0) lgkmcnt(0)
    ''')
    stamp(a, 5)
    a(f'''
    s_barrier
    s_cmp_lg_u32 s{sWV}, 0
    s_cbranch_scc1 L_a_noflag
    s_mov_b64 exec, 1
    buffer_store_dword v{T0+14}, v{T0+13}, {s(RF,4)}, 0 offen sc1
    s_mov_b64 exec, -1
    L_a_noflag:
    ''')
    if STOP == 1: a('s_branch L_fin')
    a('s_barrier')
    stamp(a, 6)
    for q in range(2):
        a(f'''
        buffer_load_dwordx2 {v(Q1(q),2)}, v{T0+10}, {s(RQ,4)}, s{sT2} offen offset:{1280*q}
        buffer_load_dwordx2 {v(Q1(q)+2,2)}, v{T0+10}, {s(RQ,4)}, s{sT2} offen offset:{1280*q+512}
        buffer_load_dwordx2 {v(Q2(q),2)}, v{T0+11}, {s(RQ,4)}, s{sT2} offen offset:{1280*q+1024}
        ''')
    def rK(t, km=KM): return f'ds_read2st64_b64 {v(km,4)}, v{vK} offset0:{6*t} offset1:{6*t+1}'
    def rP(t): return f'ds_read2st64_b64 {v(KP(t),4)}, v{vK} offset0:{6*t+2} offset1:{6*t+8}'
    def rV(t, aa): return f'ds_read_b128 {v(V1 if aa else V0,4)}, v{vV} offset:{t*TI+aa*768}'
    def qk1(q, par, km=KM): return f'v_mfma_f32_32x32x16_bf16 {v(Sr(q,par),16)}, {v(km,4)}, {v(Q1(q),4)}, 0'
    def qk2(q, par, t): return f'v_mfma_f32_32x32x8_bf16 {v(Sr(q,par),16)}, {v(KP(t),2)}, {v(Q2(q),2)}, {v(Sr(q,par),16)}'
    def pv(q, aa): return f'v_mfma_f32_32x32x16_bf16 {v(Or(q),16)}, {v(V1 if aa else V0,4)}, {v(Pr(q)+4*aa,4)}, {v(Or(q),16)}'
    M0, M1_ = T0+8, T0+9
    NM = T0+6
    def maxtree(q, par, first):
        sr = Sr(q,par); m = M0+q
        L = []
        if first: L.append(f'v_max3_f32 v{m}, v{sr}, v{sr+1}, v{sr+2}'); L.append(f'v_max_f32 v{m}, v{m}, v{sr+3}'); st = 4
        else: st = 0
        for i in range(st, 16, 2): L.append(f'v_max3_f32 v{m}, v{m}, v{sr+i}, v{sr+i+1}')
        return L
    def set_m():
        a(f'''
        v_mov_b32 v{T0}, v{M0}
        v_mov_b32 v{T0+1}, v{M1_}
        s_mov_b32 s50, {f2u(-DOFF)}
        v_cmp_lt_u32 vcc, 31, v{LANE}
        v_permlane32_swap_b32 v{T0}, v{M0}
        v_permlane32_swap_b32 v{T0+1}, v{M1_}
        s_nop 0
        v_max_f32 v{M0}, v{M0}, v{T0}
        v_max_f32 v{M1_}, v{M1_}, v{T0+1}
        v_sub_f32 v{NM}, s50, v{M0}
        v_sub_f32 v{NM+1}, s50, v{M1_}
        ''')
        for q in range(2):
            m = M0+q; t = T0+3*q
            a(f'''
            v_cvt_pk_bf16_f32 v{t}, v{NM+q}, v{NM+q}
            v_and_b32 v{t+1}, 0xffff0000, v{t}
            v_sub_f32 v{m}, v{NM+q}, v{t+1}
            v_cvt_pk_bf16_f32 v{t+1}, v{m}, v{m}
            v_and_b32 v{t+2}, 0xffff0000, v{t+1}
            v_sub_f32 v{m}, v{m}, v{t+2}
            v_cvt_pk_bf16_f32 v{m}, v{m}, 0
            v_and_or_b32 v{t}, v{t}, s51, v{t+2}
            v_cndmask_b32 v{Q2(q)}, v{Q2(q)}, v{t}, vcc
            v_cndmask_b32 v{Q2(q)+1}, v{Q2(q)+1}, v{m}, vcc
            ''')
    a('s_barrier')
    stamp(a, 7)
    KM2 = T0+12
    a(rK(0,KM2)); a(rP(0)); a(rK(1)); a(rV(0,0))
    a('s_waitcnt vmcnt(0) lgkmcnt(2)')
    a(qk1(0,0,KM2)); a(qk1(1,0,KM2)); a(qk2(0,0,0)); a(qk2(1,0,0))
    a('s_waitcnt lgkmcnt(1)')
    a(qk1(0,1)); a(qk1(1,1)); a(qk2(0,1,1)); a(qk2(1,1,1))
    a('s_nop 6')
    for x in maxtree(0,0,True) + maxtree(1,0,True): a(x)
    for x in maxtree(0,1,False) + maxtree(1,1,False): a(x)
    for i in range(4): a(f'v_mov_b32 v{Sr(1,1)+12+i}, 0')
    set_m()
    for q in range(2):
        for i in range(16): a(f'v_add_f32 v{Sr(q,0)+i}, v{NM+q}, v{Sr(q,0)+i}')
    stamp(a, 8)
    a('.p2align 6\nL_aloop:')
    for jj in range(8):
        par = jj & 1; nx = 1-par
        e = lambda q, i: f'v_exp_f32 v{Sr(q,par)+i}, v{Sr(q,par)+i}'
        c = lambda q, p_, i: f'v_cvt_pk_bf16_f32 v{Pr(q)+i}, v{Sr(q,p_)+2*i}, v{Sr(q,p_)+2*i+1}'
        ev = (jj % 2 == 0)
        ms = [(qk1(0,nx), []),
              (pv(1,1), [rV(jj, 1)]),
              (qk2(0,nx,jj+1), ['s_waitcnt lgkmcnt(1)']),
              (pv(0,0), [rP((jj+2) % 8)] if ev else []),
              (qk1(1,nx), [f's_waitcnt lgkmcnt({1 if ev else 0})', rK((jj+2) % 8)]),
              (pv(0,1), ['s_barrier'] if jj in (1,5) else []),
              (qk2(1,nx,jj+1), []),
              (pv(1,0), ['s_waitcnt lgkmcnt(0)', rV((jj+1) % 8, 0)])]
        if jj == 6: ms[0][1].append(f'v_add_u32 v{vK}, s{sTG}, v{vK}')
        if jj == 7:
            ms[3][1].append(f'v_add_u32 v{vV}, s{sTG}, v{vV}')
            ms[0][1].append(f's_add_u32 s{sC}, s{sC}, 1')
            ms[5][1].append(f's_sub_u32 s{sTG}, 0, s{sTG}')
            ms[6][1].append(f's_cmp_lt_u32 s{sC}, 8')
        for g in range(8):
            q = g >> 2; b = 4*(g & 3)
            m, xs = ms[g]
            for i in range(4): a(e(q,b+i))
            a(m)
            for x in xs: a(x)
            if g == 0: a(c(1,nx,6)); a(c(1,nx,7))
            elif g == 4: a(c(0,par,6)); a(c(0,par,7))
            else: a(c(q,par,2*(g&3)-2)); a(c(q,par,2*(g&3)-1))
    a('s_cbranch_scc1 L_aloop')
    stamp(a, 9)
    a(f'v_cvt_pk_bf16_f32 v{Pr(1)+6}, v{Sr(1,1)+12}, v{Sr(1,1)+13}\nv_cvt_pk_bf16_f32 v{Pr(1)+7}, v{Sr(1,1)+14}, v{Sr(1,1)+15}')
    a(f'v_mov_b32 v{T0+2}, 0\nv_mov_b32 v{T0+3}, 0')
    a(pv(1,1))
    a(f'''
    L_merge:
    s_mov_b32 s50, {f2u(2.0**-8)}
    s_mov_b32 s53, {f2u(2.0**118)}
    s_mul_i32 s{sT}, s{sTQ}, {RECO}
    s_mul_i32 s{sT2}, s{sHEAD}, 1280
    s_add_u32 s{sT}, s{sT}, s{sT2}
    s_add_u32 s{sT2}, s{sT}, {RECO}
    v_lshlrev_b32 v{T0+6}, 4, v{LANE}
    v_lshrrev_b32 v{T0+7}, 5, v{LANE}
    v_lshlrev_b32 v{T0+7}, 30, v{T0+7}
    v_lshl_add_u32 v{T0+7}, v{LANE}, 3, v{T0+7}
    v_mov_b32 v{T0}, v{Or(0)+8}
    v_mov_b32 v{T0+1}, v{Or(0)+8}
    ''')
    for i in range(12): a(f'v_fma_f32 v{T0+2}, abs(v{Or(0)+i}), s50, v{T0+2}')
    a(f'v_permlane32_swap_b32 v{T0}, v{T0+1}\nv_mov_b32 v{T0+4}, v{Or(1)+8}\nv_mov_b32 v{T0+5}, v{Or(1)+8}\nv_rcp_f32 v{T0+1}, v{T0+1}')
    for i in range(12): a(f'v_fma_f32 v{T0+3}, abs(v{Or(1)+i}), s50, v{T0+3}')
    a(f'''
    v_permlane32_swap_b32 v{T0+4}, v{T0+5}
    v_add_f32 v{T0+2}, v{T0+2}, v{T0+3}
    v_cmp_ngt_f32 vcc, s53, v{T0+2}
    v_rcp_f32 v{T0+5}, v{T0+5}
    ''')
    for i in range(12): a(f'v_mul_f32 v{Or(0)+i}, v{Or(0)+i}, v{T0+1}')
    a(f'''
    s_cmp_lg_u32 s{sSEC}, 0
    s_cbranch_scc1 L_safe
    s_cbranch_vccnz L_fallback
    L_safe:
    ''')
    for q in range(2):
        if q:
            for i in range(12): a(f'v_mul_f32 v{Or(q)+i}, v{Or(q)+i}, v{T0+5}')
        for i in range(6): a(f'v_cvt_pk_bf16_f32 v{Pr(q)+i}, v{Or(q)+2*i}, v{Or(q)+2*i+1}')
        a(f'''
        buffer_store_dwordx4 {v(Pr(q),4)}, v{T0+6}, {s(RO,4)}, s{sT2 if q else sT} offen {SC}
        buffer_store_dwordx2 {v(Pr(q)+4,2)}, v{T0+7}, {s(RO,4)}, s{sT2 if q else sT} offen offset:1024 {SC}
        ''')
    a(f'''
    s_and_b32 s{sT}, s{sJ}, 7
    s_lshl_b32 s{sT}, s{sT}, 5
    s_add_u32 s{sT}, s{sT}, s{sHEAD}
    s_lshl_b32 s{sT}, s{sT}, {FSH}
    s_add_u32 s{sT}, s{sT}, {WS_F2-WS_ST}
    v_mov_b32 v{T0}, s{sT}
    v_mov_b32 v{T0+1}, 1
    v_mov_b32 v{T0+2}, {L_CNT}
    s_waitcnt vmcnt(0)
    ''')
    stamp(a, 10)
    a(f'''
    s_mov_b64 exec, 1
    ds_add_rtn_u32 v{T0+3}, v{T0+2}, v{T0+1}
    s_waitcnt lgkmcnt(0)
    v_readfirstlane_b32 s50, v{T0+3}
    s_cmp_lg_u32 s50, 3
    s_cbranch_scc1 L_a_noflag2
    buffer_store_dword v{T0+1}, v{T0}, {s(RF,4)}, 0 offen sc1
    L_a_noflag2:
    s_mov_b64 exec, -1
    s_setprio 0
    ''')
    if STOP == 2: a('s_branch L_fin')
    RX, ROUT = R0, R1
    srd(RX, pX, 0, S*D*2); srd(ROUT, pOUT, 0, S*D*2)
    XD, GO, LO = 100, 110, 115
    a(f'''
    s_lshr_b32 s{sT}, s{sXCD}, 1
    s_lshl_b32 s{sT}, s{sT}, 3
    s_lshr_b32 s{sT2}, s{sJ}, 2
    s_add_u32 s{sT}, s{sT}, s{sT2}
    s_mul_i32 s{sT}, s{sT}, {64*1280}
    s_and_b32 s{sT2}, s{sXCD}, 1
    s_lshl_b32 s{sT2}, s{sT2}, 2
    s_and_b32 s50, s{sJ}, 3
    s_add_u32 s{sT2}, s{sT2}, s50
    s_mul_i32 s{sT2}, s{sT2}, 160
    s_add_u32 s{sT}, s{sT}, s{sT2}
    ''')
    for r in range(5):
        a(f'''
        v_add_u32 v{T0}, {64*r}, v{LANE}
        v_mul_u32_u24 v{T0+1}, 3277, v{T0}
        v_lshrrev_b32 v{T0+1}, 16, v{T0+1}
        v_mul_u32_u24 v{T0+2}, 20, v{T0+1}
        v_sub_u32 v{T0}, v{T0}, v{T0+2}             ; c4
        v_lshl_add_u32 v{T0+1}, s{sWV}, 4, v{T0+1}  ; position 0..63
        v_mul_u32_u24 v{T0+2}, {RS}, v{T0+1}
        v_lshl_add_u32 v{T0+2}, v{T0}, 4, v{T0+2}
        v_add_u32 v{LO+2*r}, {L_B}, v{T0+2}
        v_add_u32 v{LO+2*r+1}, {L_B+2*BW}, v{T0+2}
        v_and_b32 v{T0+2}, 1, v{T0+1}
        v_lshlrev_b32 v{T0+2}, 4, v{T0+2}
        v_bfe_u32 v{T0+3}, v{T0+1}, 1, 4
        v_and_b32 v{T0+1}, 32, v{T0+1}
        v_add3_u32 v{T0+1}, v{T0+1}, v{T0+2}, v{T0+3}
        v_mul_u32_u24 v{T0+1}, 1280, v{T0+1}
        v_lshl_add_u32 v{GO+r}, v{T0}, 3, v{T0+1}
        buffer_load_dwordx2 {v(XD+2*r,2)}, v{GO+r}, {s(RX,4)}, s{sT} offen
        ''')
    a('s_waitcnt vmcnt(0)')
    XU = 80
    for r in range(5):
        for j in range(2):
            a(f'v_lshlrev_b32 v{XU+4*r+2*j}, 16, v{XD+2*r+j}\nv_and_b32 v{XU+4*r+2*j+1}, 0xffff0000, v{XD+2*r+j}')
    a('s_barrier\ns_barrier')
    stamp(a, 11)
    for r in range(5):
        R = 16*r
        a(f'''
        ds_read_b128 {v(R,4)}, v{LO+2*r}
        ds_read_b128 {v(R+4,4)}, v{LO+2*r} offset:{BW}
        ds_read_b128 {v(R+8,4)}, v{LO+2*r+1}
        ds_read_b128 {v(R+12,4)}, v{LO+2*r+1} offset:{BW}
        ''')
        if r >= 2:
            pass
    for r in range(5):
        R = 16*r
        a(f's_waitcnt lgkmcnt({min(15, 16-4*r)})' if r else 's_waitcnt lgkmcnt(15)')
        if r == 0: a('s_waitcnt lgkmcnt(12)')
        for i in range(4): a(f'v_add_f32 v{R+i}, v{R+i}, v{R+4+i}')
        for i in range(4): a(f'v_add_f32 v{R+8+i}, v{R+8+i}, v{R+12+i}')
        for i in range(4): a(f'v_add_f32 v{R+i}, v{R+i}, v{XU+4*r+i}')
        for i in range(4): a(f'v_add_f32 v{R+i}, v{R+i}, v{R+8+i}')
        a(f'v_cvt_pk_bf16_f32 v{R+4}, v{R}, v{R+1}\nv_cvt_pk_bf16_f32 v{R+5}, v{R+2}, v{R+3}')
        a(f'buffer_store_dwordx2 {v(R+4,2)}, v{GO+r}, {s(ROUT,4)}, s{sT} offen')
    a('s_branch L_fin')
    sWID = 44
    XD, CD, CA, P_ = 8, 68, 180, 190
    a(f"""
    L_stats:
    s_mul_i32 s{sWID}, s{sXCD}, 3
    s_add_u32 s{sWID}, s{sWID}, s{sJ}
    s_and_b32 s45, s{sWID}, 3
    s_lshl_b32 s{sWID}, s{sWID}, 3
    s_add_u32 s{sWID}, s{sWID}, s{sWV}
    v_lshrrev_b32 v2, 4, v{LANE}
    v_lshl_add_u32 v2, s{sWID}, 2, v2        ; row
    v_and_b32 v3, 15, v{LANE}
    v_lshlrev_b32 v4, 3, v2
    v_mul_u32_u24 v2, 1280, v2
    v_lshl_add_u32 v2, v3, 4, v2
    s_mul_i32 s46, s{sWID}, 171
    s_lshr_b32 s46, s46, 9
    s_mul_i32 s47, s46, 3
    s_sub_u32 s47, s{sWID}, s47
    s_cmp_lt_u32 s46, 30
    s_movk_i32 s48, 3456
    s_cselect_b32 s48, 3840, s48
    s_cselect_b32 s49, 0, 30
    s_sub_u32 s49, s46, s49
    s_lshl_b32 s49, s49, 7
    s_mul_i32 s50, s47, 216
    v_lshrrev_b32 v5, 3, v{LANE}
    v_add_u32 v5, s50, v5
    v_mul_u32_u24 v5, s48, v5
    v_and_b32 v6, 7, v{LANE}
    v_lshl_add_u32 v5, v6, 4, v5
    s_mul_i32 s{R1+2}, s48, 640
    s_mov_b32 s{R1+3}, 0x20000
    s_lshl_b32 s48, s48, 3
    s_cmp_ge_u32 s46, 57
    s_cselect_b32 s49, 0x40000000, s49
    s_cmp_lt_u32 s46, 30
    s_waitcnt lgkmcnt(0)
    s_cselect_b32 s{R1}, s{pWQ}, s{pW1}
    s_cselect_b32 s{R1+1}, s{pWQ+1}, s{pW1+1}
    """)
    srd(R0, pX, 0, S*D*2); srd(R3, pWS, WS_ST, WS_END-WS_ST); srd(R4, pDBG, 0, 256)
    for k in range(3):
        a(f's_mov_b32 s50, {k*768*1280}')
        for n in range(5): a(f'buffer_load_dwordx4 {v(XD+20*k+4*n,4)}, v2, {s(R0,4)}, s50 offen offset:{256*n}')
    for n in range(27): a(f'buffer_load_dwordx4 {v(CD+4*n,4)}, v5, {s(R1,4)}, s49 offen\ns_add_u32 s49, s49, s48')
    a(f"""
    s_mul_i32 s50, s{sWID}, 3
    v_add_u32 v6, s50, v{LANE}
    v_lshlrev_b32 v6, {FSH}, v6
    v_add_u32 v6, {WS_F1-WS_ST}, v6
    v_mov_b32 v7, 0
    s_mov_b64 exec, 7
    buffer_store_dword v7, v6, {s(R3,4)}, 0 offen {SC}
    s_mov_b64 exec, -1
    s_mov_b32 s50, {ONE}
    s_mov_b32 s51, 0x3f80
    s_mov_b32 s52, 0x3f800000
    """)
    for e in range(8): a(f'v_mov_b32 v{CA+e}, 0')
    for i in range(12): a(f'v_mov_b32 v{P_+i}, 0')
    for k in range(3):
        a(f's_waitcnt vmcnt({38-5*k})')
        for i in range(20):
            a(f'v_dot2_f32_bf16 v{P_+4*k+(i&1)}, v{XD+20*k+i}, s50, v{P_+4*k+(i&1)}')
            a(f'v_dot2_f32_bf16 v{P_+4*k+2+(i&1)}, v{XD+20*k+i}, v{XD+20*k+i}, v{P_+4*k+2+(i&1)}')
    a('s_nop 2')
    for i in range(6): a(f'v_add_f32 v{P_+2*i}, v{P_+2*i}, v{P_+2*i+1}')
    for pat in ('quad_perm:[1,0,3,2]', 'quad_perm:[2,3,0,1]', 'row_half_mirror', 'row_mirror'):
        for i in range(6): a(f'v_add_f32_dpp v{P_+2*i}, v{P_+2*i}, v{P_+2*i} {pat} row_mask:0xf bank_mask:0xf')
    for k in range(3): a(f'v_mul_f32 v{P_+4*k+1}, {f2u(-1.0/640)}, v{P_+4*k}')
    for k in range(3): a(f'v_mul_f32 v{P_+4*k+2}, {f2u(1.0/640)}, v{P_+4*k+2}')
    for k in range(3): a(f'v_fma_f32 v{P_+4*k+2}, -v{P_+4*k+1}, v{P_+4*k+1}, v{P_+4*k+2}')
    for k in range(3): a(f'v_max_f32 v{P_+4*k+2}, 0, v{P_+4*k+2}')
    for k in range(3): a(f'v_add_f32 v{P_+4*k+2}, {f2u(1e-5)}, v{P_+4*k+2}')
    for k in range(3): a(f'v_rsq_f32 v{P_+4*k}, v{P_+4*k+2}')
    a(f"""
    s_cmp_lt_u32 s{sWID}, 128
    s_cselect_b32 s53, {2*768*8}, 0x40000000
    s_movk_i32 s54, {768*8}
    s_mov_b32 exec_lo, 0x10001
    s_mov_b32 exec_hi, 0x10001
    buffer_store_dwordx2 {v(P_,2)}, v4, {s(R3,4)}, 0 offen {SC}
    buffer_store_dwordx2 {v(P_+4,2)}, v4, {s(R3,4)}, s54 offen {SC}
    buffer_store_dwordx2 {v(P_+8,2)}, v4, {s(R3,4)}, s53 offen {SC}
    s_mov_b64 exec, -1
    """.replace(f's_cselect_b32 s53, {2*768*8}, 0x40000000', f's_mov_b32 s53, 0x40000000\ns_cselect_b32 s53, {2*768*8}, s53'))
    for n in range(27):
        if n % 3 == 0: a(f's_waitcnt vmcnt({28-n})')
        for j in range(4):
            a(f'v_dot2_f32_bf16 v{CA+2*j}, v{CD+4*n+j}, s51, v{CA+2*j}\nv_dot2_f32_bf16 v{CA+2*j+1}, v{CD+4*n+j}, s52, v{CA+2*j+1}')
    a('s_nop 1')
    a('s_nop 1')
    for e in range(4): a(f'v_permlane32_swap_b32 v{CA+e}, v{CA+e+4}')
    a('s_nop 0')
    for e in range(4): a(f'v_add_f32 v{CA+e}, v{CA+e}, v{CA+e+4}')
    a('s_nop 1')
    for e in range(2): a(f'v_permlane16_swap_b32 v{CA+e}, v{CA+e+2}')
    a('s_nop 0')
    for e in range(2): a(f'v_add_f32 v{CA+e}, v{CA+e}, v{CA+e+2}')
    a(f"""
    v_and_b32 v2, 8, v{LANE}
    v_cmp_ne_u32 vcc, 0, v2
    v_add_f32_dpp v{CA}, v{CA}, v{CA} row_ror:8 row_mask:0xf bank_mask:0xf
    v_add_f32_dpp v{CA+1}, v{CA+1}, v{CA+1} row_ror:8 row_mask:0xf bank_mask:0xf
    v_and_b32 v3, 7, v{LANE}
    v_lshrrev_b32 v4, 5, v{LANE}
    v_lshl_add_u32 v3, v3, 1, v4
    v_cndmask_b32 v{CA}, v{CA}, v{CA+1}, vcc
    v_bfe_u32 v4, v{LANE}, 4, 1
    v_lshrrev_b32 v2, 1, v2
    v_lshl_add_u32 v4, v4, 3, v2
    v_lshl_add_u32 v3, v3, 4, v4            ; 4 * column
    s_lshl_b32 s49, s46, 8
    s_mul_i32 s47, s47, {CPS}
    s_add_u32 s49, s49, s47
    s_add_u32 s49, s49, {WS_CP-WS_ST}
    s_cmp_ge_u32 s46, 57
    s_cselect_b32 s49, 0x40000000, s49
    buffer_store_dword v{CA}, v3, {s(R3,4)}, s49 offen {SC}
    v_and_b32 v94, 3, v{LANE}
    v_lshlrev_b32 v94, 6, v94
    s_lshl_b32 s45, s45, 6
    v_mov_b32 v2, s45
    v_mov_b32 v3, 1
    s_waitcnt vmcnt(0)
    """)
    stamp(a, 1)
    a(f"""
    s_barrier
    s_cmp_lg_u32 s{sWV}, 4
    s_cbranch_scc1 L_st_join
    s_mov_b64 exec, 1
    buffer_atomic_add v3, v2, {s(R4,4)}, 0 offen sc1
    """)
    poll('p0s', 94, 93, R4, 6, 0xF, nap=1, pre='s_sleep 40')
    a(f"""
    L_st_join:
    s_mov_b32 s{sCG}, 29
    s_mov_b32 s{sMB}, s{sJ}
    s_cmp_lt_u32 s{sWV}, 4
    s_cbranch_scc1 L_epi_done
    s_sub_u32 s44, s{sWV}, 4
    s_branch L_b_phase2
    """)
    gV = T0+12
    a(f'''
    L_fallback:
    s_waitcnt lgkmcnt(0)
    s_mov_b32 s{sSEC}, 1
    v_and_b32 v{T0}, 31, v{LANE}
    v_lshrrev_b32 v{T0+1}, 5, v{LANE}
    v_lshlrev_b32 v{T0+1}, 6, v{T0+1}
    v_lshrrev_b32 v{T0+2}, 2, v{T0}
    v_lshl_add_u32 v{T0+1}, v{T0+2}, 8, v{T0+1}
    v_and_b32 v{T0+2}, 3, v{T0}
    v_lshl_add_u32 v{gV}, v{T0+2}, 4, v{T0+1}
    v_cmp_eq_u32 s[54:55], 20, v{T0}
    v_cmp_lt_u32 vcc, 31, v{LANE}
    v_mov_b32 v{M0}, 0xff800000
    v_mov_b32 v{M1_}, 0xff800000
    v_mov_b32 v{KP(0)}, {ONE}
    v_mov_b32 v{KP(0)+1}, 0x3f80
    ''')
    for i in range(8): a(f'v_cndmask_b32 v{V0+i}, 0, v{KP(0)}, s[54:55]')
    for q in range(2):
        for i in range(2): a(f'v_cndmask_b32_e64 v{Q2(q)+i}, v{Q2(q)+i}, 0, vcc')
    def ldK():
        a(f'''
        buffer_load_dwordx2 {v(KM,2)}, v{vK}, {s(RKV,4)}, s{sT} offen
        buffer_load_dwordx2 {v(KM+2,2)}, v{vK}, {s(RKV,4)}, s{sT} offen offset:512
        s_mov_b32 exec_hi, 0
        buffer_load_dwordx2 {v(KP(0),2)}, v{vK}, {s(RKV,4)}, s{sT} offen offset:1024
        s_mov_b32 exec_hi, -1
        ''')
    a(f's_mov_b32 s{sT}, s{sHB}\ns_mov_b32 s{sC}, 0\nL_fb1:')
    ldK()
    a('s_waitcnt vmcnt(0)')
    a(qk1(0,0)); a(qk1(1,0)); a(qk2(0,0,0)); a(qk2(1,0,0))
    a('s_nop 15')
    for x in maxtree(0,0,False) + maxtree(1,0,False): a(x)
    a(f'''
    s_add_u32 s{sT}, s{sT}, {KVREC}
    s_add_u32 s{sC}, s{sC}, 1
    s_cmp_lt_u32 s{sC}, 64
    s_cbranch_scc1 L_fb1
    ''')
    set_m()
    for i in range(32): a(f'v_mov_b32 v{Or(0)+i}, 0')
    a(f's_mov_b32 s{sT}, s{sHB}\ns_mov_b32 s{sC}, 0\nL_fb2:')
    ldK()
    a(f'''
    s_mov_b32 exec_lo, 0xfffff
    s_mov_b32 exec_hi, 0xfffff
    buffer_load_dwordx4 {v(V0,4)}, v{gV}, {s(RKV,4)}, s{sT} offen offset:1280
    buffer_load_dwordx4 {v(V1,4)}, v{gV}, {s(RKV,4)}, s{sT} offen offset:1408
    s_mov_b64 exec, -1
    s_waitcnt vmcnt(0)
    ''')
    a(qk1(0,0)); a(qk1(1,0)); a(qk2(0,0,0)); a(qk2(1,0,0))
    a('s_nop 15')
    for q in range(2):
        for i in range(16): a(f'v_exp_f32 v{Sr(q,0)+i}, v{Sr(q,0)+i}')
    for q in range(2):
        for i in range(8): a(f'v_cvt_pk_bf16_f32 v{Pr(q)+i}, v{Sr(q,0)+2*i}, v{Sr(q,0)+2*i+1}')
    a('s_nop 1')
    a(pv(0,0)); a(pv(1,0)); a(pv(0,1)); a(pv(1,1))
    a(f'''
    s_add_u32 s{sT}, s{sT}, {KVREC}
    s_add_u32 s{sC}, s{sC}, 1
    s_cmp_lt_u32 s{sC}, 64
    s_cbranch_scc1 L_fb2
    v_mov_b32 v{T0+2}, 0
    v_mov_b32 v{T0+3}, 0
    s_nop 7
    s_branch L_merge
    L_fin:
    ''')
    stamp(a, 12)
    if STAMPS: a('s_waitcnt vmcnt(0)')
    stamp(a, 13); stamp(a, 15, True)
    DG = os.environ.get('KF_DIAG')
    if DG is None: stamp_dump(a, sWV, 16, 42, 0, 250)
    else:
        w_, sl_ = [int(x) for x in DG.split(',')]
        a(f"""
        s_cmp_lg_u32 s{sWV}, {w_}
        s_cbranch_scc1 L_end
        s_cmp_lt_u32 s{sJ}, 3
        s_cbranch_scc1 L_end
        s_mov_b32 s53, 0
        L_dg:
        s_memrealtime s[100:101]
        s_add_u32 s53, s53, 1
        s_cmp_gt_u32 s53, 20000
        s_cbranch_scc1 L_end
        s_waitcnt lgkmcnt(0)
        s_sub_u32 s100, s100, s{64+2*sl_}
        s_cmp_lt_u32 s100, 6000
        s_cbranch_scc1 L_dg
        """)
    a('L_end:\ns_endpgm')
    return a.text(), kernel_desc(name, 256).replace('denorm_mode_32 3', 'denorm_mode_32 0')

if __name__ == '__main__':
    import sys
    KN = 'parallel_sum__mha_block__dense_activation_relu__prompt_kernel'
    HDR = open('parallel_sum__mha_block__dense_activation_relu__prompt.s.ref').read().split('; Override')[0]
    t, d = gen_kg(KN)
    open(sys.argv[1], 'w').write(HDR + f'; @launch grid=(256,1,1) block=({KF_THREADS},1,1) lds={KF_LDS}\n.amdgcn_target "amdgcn-amd-amdhsa--gfx950"\n' + t + d)
```
